```python
import torch

def _softmax(x, axis=-1):
    return torch.softmax(x, dim=axis)
def _gelu(x):
    return torch.nn.functional.gelu(x, approximate="tanh")
def _silu(x):
    return torch.nn.functional.silu(x)
def _sigmoid(x):
    return torch.sigmoid(x)
def _layernorm(x, axis=-1, eps=1e-5):
    m = x.mean(dim=axis, keepdim=True)
    v = x.var(dim=axis, keepdim=True, unbiased=False)
    return (x - m) / torch.sqrt(v + eps)
def _scatter_add(tgt, idx, src, axis=0):
    return tgt.clone().index_add_(axis, idx, src)
def _segment_sum(src, seg, n):
    out = torch.zeros((n,) + src.shape[1:], dtype=src.dtype)
    return out.index_add_(0, seg, src)
def _pad(x, pw):
    flat = tuple(v for pair in reversed(pw) for v in pair)
    return torch.nn.functional.pad(x, flat)

kernel_name = 'recurrent_scan__mha_block__glu_gated_swiglu__prompt'

def setup_inputs():

    _w = (lambda a: (lambda t: t.to(torch.bfloat16) if t.is_floating_point() else t)(torch.as_tensor(a)))
    def _A_setup():
        B, S, D, H = 1, 2048, 512, 32
        return {
            "x": _w((lambda *s: torch.randn(*s, dtype=torch.bfloat16) * 0.05)(B, S, D)),
            "wqkv": _w((lambda *s: torch.randn(*s, dtype=torch.bfloat16) * 0.2)(D, 3 * D)),
            "wo": _w((lambda *s: torch.randn(*s, dtype=torch.bfloat16) * 0.2)(D, D)),
        }
    _A_in = _A_setup()

    def _B_setup():
        B, S, D, F = 1, 2048, 512, 1376
        return {
            "x": _w((lambda *s: torch.randn(*s, dtype=torch.bfloat16) * 0.05)(B, S, D)),
            "w1": _w((lambda *s: torch.randn(*s, dtype=torch.bfloat16) * 0.1)(D, F) * (2.0 / D) ** 0.5),
            "w3": _w((lambda *s: torch.randn(*s, dtype=torch.bfloat16) * 0.1)(D, F) * (2.0 / D) ** 0.5),
            "w2": _w((lambda *s: torch.randn(*s, dtype=torch.bfloat16) * 0.1)(F, D) * (2.0 / F) ** 0.5),
        }
    _B_in = _B_setup()

    return {
        "A_x": _A_in["x"],
        "A_wqkv": _A_in["wqkv"],
        "A_wo": _A_in["wo"],
        "B_x": _B_in["x"],
        "B_w1": _B_in["w1"],
        "B_w3": _B_in["w3"],
        "B_w2": _B_in["w2"],
    }

def reference(A_x, A_wqkv, A_wo, B_x, B_w1, B_w3, B_w2):
    def _A_ref(x, wqkv, wo):
        B, S, D = x.shape
        H = 32
        Dh = D // H
        qkv = (lambda x, *d: x.permute(*d))((x @ wqkv).reshape(B, S, 3, H, Dh), 2, 0, 3, 1, 4)
        q, k, v = qkv[0], qkv[1], qkv[2]
        scores = torch.einsum("bhqd,bhkd->bhqk", q, k) * (Dh ** -0.5)
        p = _softmax(scores, axis=-1)
        o = torch.einsum("bhqk,bhkd->bhqd", p, v)
        return (lambda x, *d: x.permute(*d))(o, 0, 2, 1, 3).reshape(B, S, D) @ wo

    def _B_ref(x, w1, w3, w2):
        gate = torch.einsum("bsd,df->bsf", x, w1)
        up = torch.einsum("bsd,df->bsf", x, w3)
        h = _silu(gate) * up
        out = torch.einsum("bsf,fd->bsd", h, w2)
        return out

    x = A_x
    xn = _layernorm(x, axis=-1)
    s = _A_ref(xn, A_wqkv, A_wo)
    g = _silu(_B_ref(xn, B_w1, B_w3, B_w2))
    return x + s * g
```

```python
class Asm:
    def __init__(self):
        self.L=[]
        self.uid=0
    def __call__(self, s):
        for line in s.strip("\n").split("\n"):
            line=line.strip()
            if not line: continue
            if line.endswith(":") or line.startswith("."): self.L.append(line)
            else: self.L.append("  "+line)
    def label(self, base):
        self.uid+=1
        return f"L_{base}_{self.uid}"
    def text(self): return "\n".join(self.L)+"\n"
def v(a,n=1): return f"v{a}" if n==1 else f"v[{a}:{a+n-1}]"
def s(a,n=1): return f"s{a}" if n==1 else f"s[{a}:{a+n-1}]"
def srd(A, d, base, off, size):
    if off:
        A(f"s_add_u32 s{d}, s{base}, {off:#x}")
        A(f"s_addc_u32 s{d+1}, s{base+1}, 0")
    else:
        A(f"s_mov_b32 s{d}, s{base}")
        A(f"s_mov_b32 s{d+1}, s{base+1}")
    A(f"s_mov_b32 s{d+2}, {size:#x}")
    A(f"s_mov_b32 s{d+3}, 0x20000")
def kd(name, nv, ns=100):
    return f""".section .rodata,"a"
.p2align 6
.amdhsa_kernel {name}
  .amdhsa_next_free_vgpr {nv}
  .amdhsa_next_free_sgpr {ns}
  .amdhsa_accum_offset {(nv+3)//4*4}
  .amdhsa_group_segment_fixed_size 0
  .amdhsa_kernarg_size 80
  .amdhsa_user_sgpr_count 2
  .amdhsa_user_sgpr_kernarg_segment_ptr 1
  .amdhsa_system_sgpr_workgroup_id_x 1
.end_amdhsa_kernel
"""
def head(name):
    return f""".text
.globl {name}
.p2align 8
.type {name},@function
{name}:
"""
MB=1<<20
QF=0; KF=2*MB; VF=4*MB; XN=6*MB; OF=8*MB
W13F=10*MB; W13F_SZ=43*32*2*1024
W2F=13*MB; W2F_SZ=16*86*1024
WOF=15*MB; WOF_SZ=16*32*1024
HF=16*MB; HF_SZ=64*86*1024
GF=22*MB
WS_USED=26*MB
```

```python
from asmlib import *
import math
def gen_k1(name):
    A=Asm()
    SLOT=28672; NSLOT=5; FR=143360
    A(f"""
    s_cmp_ge_u32 s2, 256
    s_cbranch_scc1 {name}_end
    s_load_dwordx16 s[4:19], s[0:1], 0
    s_load_dwordx2 s[20:21], s[0:1], 72
    v_and_b32 v1, 63, v0
    v_lshrrev_b32 v2, 6, v0
    s_and_b32 s40, s2, 7
    s_lshr_b32 s41, s2, 3
    v_readfirstlane_b32 s42, v2
    s_lshr_b32 s43, s40, 1
    s_lshl_b32 s43, s43, 2
    s_lshr_b32 s44, s41, 3
    s_add_u32 s43, s43, s44
    s_and_b32 s44, s40, 1
    s_lshl_b32 s44, s44, 3
    s_and_b32 s45, s41, 7
    s_add_u32 s44, s44, s45
    """)
    A("""
    v_lshrrev_b32 v3, 3, v1
    v_lshlrev_b32 v3, 10, v3
    s_lshl_b32 s45, s42, 15
    v_add_u32 v3, s45, v3
    v_and_b32 v8, 7, v1
    v_lshrrev_b32 v9, 4, v1
    v_xor_b32 v8, v8, v9
    v_lshl_add_u32 v4, v8, 4, v3
    v_xor_b32 v8, 4, v8
    v_lshl_add_u32 v5, v8, 4, v3
    v_add_u32 v5, 0x2000, v5
    v_add_u32 v6, 0x4000, v4
    v_add_u32 v7, 0x4000, v5
    """)
    A("s_mov_b32 s46, 0xAAAB")
    A("s_mul_i32 s45, s42, 49152")
    for j in range(3):
        A(f"""
        v_add_u32 v11, {64*j}, v1
        v_mul_lo_u32 v12, v11, s46
        v_lshrrev_b32 v12, 19, v12
        v_mul_u32_u24 v13, 12, v12
        v_sub_u32 v13, v11, v13
        v_mul_u32_u24 v12, 0xc00, v12
        v_lshrrev_b32 v14, 2, v13
        v_lshl_add_u32 v12, v14, 10, v12
        v_and_b32 v13, 3, v13
        v_lshl_add_u32 v12, v13, 4, v12
        v_add_u32 v{8+j}, s45, v12
        """)
    A("s_waitcnt lgkmcnt(0)")
    srd(A,24,4,0,2048*1024)
    srd(A,28,6,0,512*3072)
    srd(A,36,20,0,WS_USED)
    A("""
    s_lshl_b32 s47, s43, 17
    s_lshl_b32 s48, s44, 6
    s_lshl_b32 s49, s42, 12
    s_mul_i32 s50, s42, 3072
    s_add_u32 s50, s50, 16384
    """)
    def issue_chunk(c):
        sl=(c%NSLOT)*SLOT
        A(f"s_add_u32 s51, s47, {c*128}")
        for j in range(4):
            A(f"s_add_u32 m0, s49, {sl+j*1024}")
            A(f"s_nop 0")
            A(f"buffer_load_dwordx4 v{4+j}, s[24:27], s51 offen lds")
        A(f"s_add_u32 s51, s48, {c*196608}")
        for j in range(3):
            A(f"s_add_u32 m0, s50, {sl+j*1024}")
            A(f"s_nop 0")
            A(f"buffer_load_dwordx4 v{8+j}, s[28:31], s51 offen lds")
    for c in range(5): issue_chunk(c)
    A("""
    v_and_b32 v11, 31, v1
    v_lshrrev_b32 v12, 5, v1
    v_lshlrev_b32 v13, 10, v11
    v_lshl_add_u32 v13, v12, 4, v13
    s_lshl_b32 s45, s42, 15
    s_add_u32 s45, s45, s47
    s_add_u32 s45, s45, s48
    s_nop 0
    buffer_load_dwordx4 v[16:19], v13, s[24:27], s45 offen
    buffer_load_dwordx4 v[20:23], v13, s[24:27], s45 offen offset:32
    """)
    A("""
    s_lshl_b32 s52, s2, 2
    s_add_u32 s52, s52, s42
    v_lshrrev_b32 v14, 2, v1
    v_and_b32 v15, 3, v1
    v_lshlrev_b32 v15, 4, v15
    s_mul_i32 s53, s42, 5120
    """)
    A(f"s_add_u32 s53, s53, {FR}")
    for j in range(5):
        la=A.label("w13"); lb=A.label("w2"); lg=A.label("go")
        A(f"s_add_u32 s54, s52, {1024*j}")
        if j==4: A("s_min_u32 s54, s54, 4639")
        if j==2:
            A(f"s_cmp_ge_u32 s54, 2752")
            A(f"s_cbranch_scc1 {lb}")
        if j<=2:
            A(f"""
            s_cmp_ge_u32 s54, 1376
            s_cselect_b32 s55, 1, 0
            s_cselect_b32 s32, s14, s12
            s_cselect_b32 s33, s15, s13
            s_mul_i32 s56, s55, 1376
            s_sub_u32 s56, s54, s56
            s_mul_i32 s57, s56, 6097
            s_lshr_b32 s57, s57, 18
            s_mul_i32 s58, s57, 43
            s_sub_u32 s58, s56, s58
            s_mov_b32 s34, {512*2752}
            s_mov_b32 s59, 2752
            s_mul_i32 s56, s57, {16*2752}
            s_lshl_b32 s70, s58, 6
            s_add_u32 s56, s56, s70
            s_lshl_b32 s70, s58, 16
            s_lshl_b32 s57, s57, 11
            s_add_u32 s70, s70, s57
            s_lshl_b32 s55, s55, 10
            s_add_u32 s70, s70, s55
            s_add_u32 s{60+j}, s70, {W13F}
            s_mov_b32 s{65+j}, 0
            """)
        if j==2: A(f"s_branch {lg}")
        A(f"{lb}:")
        if j>=2:
            A(f"""
            s_sub_u32 s55, s54, 2752
            s_mov_b32 s34, {1376*1024}
            s_mov_b32 s71, {86*1024}
            s_mov_b32 s72, {W2F}
            s_cmp_ge_u32 s55, 1376
            s_cselect_b32 s32, s8, s16
            s_cselect_b32 s33, s9, s17
            s_cselect_b32 s34, {512*1024}, s34
            s_cselect_b32 s56, 1376, 0
            s_cselect_b32 s71, {32*1024}, s71
            s_cselect_b32 s72, {WOF}, s72
            s_sub_u32 s55, s55, s56
            s_lshr_b32 s57, s55, 4
            s_and_b32 s58, s55, 15
            s_mov_b32 s59, 1024
            s_lshl_b32 s56, s57, 14
            s_lshl_b32 s70, s58, 6
            s_add_u32 s56, s56, s70
            s_mul_i32 s70, s58, s71
            s_lshl_b32 s57, s57, 10
            s_add_u32 s70, s70, s57
            s_add_u32 s{60+j}, s70, s72
            s_mov_b32 s{65+j}, 1
            """)
        A(f"{lg}:")
        A(f"""
        s_mov_b32 s35, 0x20000
        v_mad_u32_u24 v11, v14, s59, v15
        s_add_u32 m0, s53, {j*1024}
        s_nop 0
        buffer_load_dwordx4 v11, s[32:35], s56 offen lds
        """)
    A("""
    v_and_b32 v11, 31, v1
    v_lshrrev_b32 v12, 5, v1
    v_bfe_u32 v13, v1, 1, 3
    v_xor_b32 v13, v13, v12
    v_lshlrev_b32 v14, 7, v11
    v_add_u32 v14, s49, v14
    """)
    for st in range(4):
        A(f"v_xor_b32 v15, {2*st}, v13")
        A(f"v_lshl_add_u32 v{24+st}, v15, 4, v14")
    A("""
    v_bfe_u32 v13, v1, 2, 2
    v_lshl_add_u32 v13, v12, 3, v13
    v_mul_u32_u24 v13, 0xc0, v13
    v_bfe_u32 v14, v1, 4, 1
    v_lshl_add_u32 v13, v14, 5, v13
    v_and_b32 v14, 3, v1
    v_lshl_add_u32 v28, v14, 3, v13
    v_mov_b32 v29, 0x3f803f80
    """)
    for r in list(range(48,58))+list(range(64,112)): A(f"v_mov_b32 v{r}, 0")
    XF=[40,44]; WF=[112,124]
    def reads(c,st,buf):
        A(f"ds_read_b128 {v(XF[buf],4)}, v{30+st}")
        for bq in range(3):
            for p in range(2):
                A(f"ds_read_b64_tr_b16 {v(WF[buf]+4*bq+2*p,2)}, v34 offset:{16384+st*3072+p*768+bq*64}")
    waits=[35,28,28,28,28,14,7,0]
    for c in range(8):
        sl=(c%NSLOT)*SLOT
        for st in range(4): A(f"v_add_u32 v{30+st}, {sl}, v{24+st}")
        A(f"v_add_u32 v34, {sl}, v28")
        A(f"s_waitcnt vmcnt({waits[c]})")
        A("s_barrier")
        reads(c,0,0)
        if 1<=c<=3: issue_chunk(c+4)
        for st in range(4):
            b=st&1
            if st<3:
                reads(c,st+1,b^1)
                A("s_waitcnt lgkmcnt(7)")
            else:
                A("s_waitcnt lgkmcnt(0)")
            x=XF[b]; w=WF[b]
            dots=[]
            for i in range(4):
                dots.append(f"v_dot2_f32_bf16 v{48+(i&1)}, v{x+i}, v29, v{48+(i&1)}")
                dots.append(f"v_dot2_f32_bf16 v{50+(i&1)}, v{x+i}, v{x+i}, v{50+(i&1)}")
            for i in range(4):
                for bq in range(3):
                    dots.append(f"v_dot2_f32_bf16 v{52+2*bq+(i&1)}, v{w+4*bq+i}, v29, v{52+2*bq+(i&1)}")
            A(f"v_mfma_f32_32x32x16_bf16 v[64:79], {v(w,4)}, {v(x,4)}, v[64:79]")
            for d in dots[0:7]: A(d)
            A(f"v_mfma_f32_32x32x16_bf16 v[80:95], {v(w+4,4)}, {v(x,4)}, v[80:95]")
            for d in dots[7:14]: A(d)
            A(f"v_mfma_f32_32x32x16_bf16 v[96:111], {v(x,4)}, {v(w+8,4)}, v[96:111]")
            for d in dots[14:]: A(d)
    A("""
    v_bfe_u32 v13, v1, 2, 2
    v_bfe_u32 v14, v1, 4, 1
    v_lshlrev_b32 v13, 6, v13
    v_lshl_add_u32 v13, v14, 5, v13
    v_and_b32 v14, 3, v1
    v_lshl_add_u32 v13, v14, 3, v13
    v_add_u32 v13, s53, v13
    v_lshrrev_b32 v12, 5, v1
    """)
    for j in range(5):
        A(f"""
        s_lshl_b32 s54, s{65+j}, 8
        s_sub_u32 s55, 512, s54
        s_add_u32 s54, s54, 256
        v_mad_u32_u24 v14, v12, s55, v13
        v_add_u32 v15, s54, v14
        ds_read_b64_tr_b16 {v(112+4*j,2)}, v14 offset:{j*1024}
        ds_read_b64_tr_b16 {v(114+4*j,2)}, v15 offset:{j*1024}
        """)
    A("""
    v_add_f32 v48, v48, v49
    v_add_f32 v50, v50, v51
    v_add_f32 v52, v52, v53
    v_add_f32 v54, v54, v55
    v_add_f32 v56, v56, v57
    v_mov_b32 v49, v48
    v_mov_b32 v51, v50
    v_mov_b32 v53, v52
    v_mov_b32 v55, v54
    v_mov_b32 v57, v56
    s_nop 1
    v_permlane32_swap_b32 v48, v49
    v_permlane32_swap_b32 v50, v51
    v_permlane32_swap_b32 v52, v53
    v_permlane32_swap_b32 v54, v55
    v_permlane32_swap_b32 v56, v57
    s_nop 1
    v_add_f32 v48, v48, v49
    v_add_f32 v50, v50, v51
    v_add_f32 v52, v52, v53
    v_add_f32 v54, v54, v55
    v_add_f32 v56, v56, v57
    v_mul_f32 v48, 0x3b000000, v48
    v_mul_f32 v50, 0x3b000000, v50
    v_fma_f32 v50, -v48, v48, v50
    v_max_f32 v50, 0, v50
    v_add_f32 v50, 0x3727c5ac, v50
    v_rsq_f32 v49, v50
    v_lshlrev_b32 v2, 4, v1
    s_waitcnt lgkmcnt(0)
    """)
    for j in range(5):
        A(f"buffer_store_dwordx4 {v(112+4*j,4)}, v2, s[36:39], s{60+j} offen")
    A("""
    v_and_b32 v11, 31, v1
    v_lshlrev_b32 v11, 2, v11
    v_add_u32 v11, s53, v11
    ds_write_b32 v11, v48
    ds_write_b32 v11, v49 offset:128
    ds_write_b32 v11, v52 offset:256
    ds_write_b32 v11, v54 offset:384
    v_lshlrev_b32 v12, 4, v12
    v_add_u32 v12, s53, v12
    s_waitcnt lgkmcnt(0)
    """)
    for q,(dst,off) in enumerate([(168,256),(184,384),(136,0),(152,128)]):
        for j in range(4):
            A(f"ds_read_b128 {v(dst+4*j,4)}, v12 offset:{off+32*j}")
    A("v_mul_f32 v50, v48, v49")
    A("v_sub_f32 v50, 0, v50")
    for e in range(2):
        for i in range(4):
            r=16+4*e+i
            A(f"""
            v_lshlrev_b32 v58, 16, v{r}
            v_and_b32 v59, 0xffff0000, v{r}
            v_fma_f32 v58, v58, v49, v50
            v_fma_f32 v59, v59, v49, v50
            v_cvt_pk_bf16_f32 v{r}, v58, v59
            """)
    A(f"""
    s_lshl_b32 s54, s43, 2
    s_add_u32 s54, s54, s42
    s_lshl_b32 s55, s54, 15
    s_lshl_b32 s56, s44, 11
    s_add_u32 s55, s55, s56
    s_add_u32 s55, s55, {XN}
    s_nop 0
    buffer_store_dwordx4 v[16:19], v2, s[36:39], s55 offen
    buffer_store_dwordx4 v[20:23], v2, s[36:39], s55 offen offset:1024
    """)
    qs=0.25*math.log2(math.e)
    import struct
    qsb=struct.unpack("<I",struct.pack("<f",qs))[0]
    A(f"v_mul_f32 v51, {qsb:#x}, v49")
    A(f"v_mul_f32 v53, {qsb:#x}, v50")
    A("s_waitcnt lgkmcnt(8)")
    for blk,(acc,cs,a,b) in enumerate([(64,168,51,53),(80,184,49,50)]):
        for r in range(16):
            A(f"v_mul_f32 v{acc+r}, v{a}, v{acc+r}")
            A(f"v_fmac_f32 v{acc+r}, v{b}, v{cs+r}")
        for r in range(8):
            A(f"v_cvt_pk_bf16_f32 v{acc+r}, v{acc+2*r}, v{acc+2*r+1}")
    A(f"""
    s_lshl_b32 s55, s44, 17
    s_lshl_b32 s56, s54, 10
    s_add_u32 s55, s55, s56
    s_add_u32 s56, s55, 0x10000
    s_add_u32 s57, s55, {KF}
    s_add_u32 s58, s56, {KF}
    v_and_b32 v11, 0x33, v1
    v_bfe_u32 v13, v1, 2, 1
    v_lshl_or_b32 v11, v13, 3, v11
    v_bfe_u32 v13, v1, 3, 1
    v_lshl_or_b32 v11, v13, 2, v11
    v_lshlrev_b32 v11, 4, v11
    buffer_store_dwordx4 v[64:67], v2, s[36:39], s55 offen
    buffer_store_dwordx4 v[68:71], v2, s[36:39], s56 offen
    buffer_store_dwordx4 v[80:83], v11, s[36:39], s57 offen
    buffer_store_dwordx4 v[84:87], v11, s[36:39], s58 offen
    s_waitcnt lgkmcnt(0)
    """)
    for r in range(16):
        A(f"v_fma_f32 v{96+r}, -v{136+r}, v56, v{96+r}")
        A(f"v_mul_f32 v{96+r}, v{96+r}, v{152+r}")
    for r in range(8):
        A(f"v_cvt_pk_bf16_f32 v{96+r}, v{96+2*r}, v{96+2*r+1}")
    A(f"""
    v_and_b32 v11, 15, v1
    v_lshrrev_b32 v13, 5, v1
    v_lshl_add_u32 v11, v13, 4, v11
    v_lshlrev_b32 v11, 4, v11
    v_bfe_u32 v13, v1, 4, 1
    v_lshl_add_u32 v11, v13, 16, v11
    s_add_u32 s55, s55, {VF}
    s_nop 0
    buffer_store_dwordx4 v[96:99], v11, s[36:39], s55 offen
    buffer_store_dwordx4 v[100:103], v11, s[36:39], s55 offen offset:512
    {name}_end:
    s_endpgm
    """)
    return head(name)+A.text(), kd(name,200), 163840
```

```python
from asmlib import *
import struct, math
def fbits(x): return struct.unpack("<I",struct.pack("<f",x))[0]
SHIFT=80.0
MF="v_mfma_f32_32x32x16_bf16"; SM="v_smfmac_f32_32x32x32_bf16"
def attn(A,name,opts):
    QA,QB=8,12; KB=[16,20]; VB=[24,32]; NM=[40,56]; O=[72,88]; S=[104,120,136,152]
    Q=[QA,QB]
    srd(A,24,20,0,WS_USED)
    A(f"""
    s_lshl_b32 s43, s40, 2
    s_lshr_b32 s44, s41, 3
    s_add_u32 s43, s43, s44
    s_and_b32 s44, s41, 7
    s_lshl_b32 s44, s44, 3
    s_lshl_b32 s45, s42, 1
    s_add_u32 s44, s44, s45
    v_lshlrev_b32 v4, 4, v1
    s_lshl_b32 s46, s43, 16
    s_lshl_b32 s47, s44, 10
    s_add_u32 s47, s47, s46
    s_nop 0
    buffer_load_dwordx4 v[8:11], v4, s[24:27], s47 offen
    buffer_load_dwordx4 v[12:15], v4, s[24:27], s47 offen offset:1024
    s_add_u32 s48, s46, {KF}
    s_add_u32 s49, s46, {VF}
    """)
    def dma(base,per,n):
        A(f"s_mul_i32 s50, s42, {per}")
        for reg,lds in ((48,0),(49,65536)):
            for j in range(n):
                if j%4==0:
                    A(f"s_add_u32 s51, s50, {base+j*1024}")
                    A(f"s_add_u32 m0, s51, {lds}")
                    A(f"s_add_u32 s51, s51, s{reg}")
                A(f"buffer_load_dwordx4 v4, s[24:27], s51 offen offset:{(j%4)*1024} lds")
    dma(0,3072,3); dma(12288,4096,4); dma(28672,9216,9)
    A(f"""
    v_mov_b32 v3, 0xdddd
    v_and_b32 v5, 15, v1
    v_lshrrev_b32 v6, 5, v1
    v_lshl_add_u32 v5, v6, 4, v5
    v_lshlrev_b32 v5, 4, v5
    v_add_u32 v5, 0x10000, v5
    s_mov_b32 s52, 0x0000ffff
    s_mov_b32 s53, 0x0000ffff
    s_mov_b32 s54, 0
    """)
    for r in range(24,40): A(f"v_mov_b32 v{r}, 0x3f803f80")
    A("s_waitcnt vmcnt(26)")
    A("s_barrier")
    A(f"ds_read_b128 {v(KB[0],4)}, v4")
    A("s_waitcnt lgkmcnt(0)")
    for b in range(2): A(f"{MF} {v(S[b],16)}, {v(KB[0],4)}, {v(Q[b],4)}, 0")
    A("s_nop 10")
    def maxtree(src,dst,first):
        for i in range(8):
            if i==0 and first: A(f"v_max_f32 v{dst}, v{src}, v{src+1}")
            else: A(f"v_max3_f32 v{dst}, v{src+2*i}, v{src+2*i+1}, v{dst}")
    def finish_max(shift):
        A("""
        v_mov_b32 v168, v6
        v_mov_b32 v169, v7
        s_nop 1
        v_permlane32_swap_b32 v6, v168
        v_permlane32_swap_b32 v7, v169
        s_nop 1
        v_max_f32 v6, v6, v168
        v_max_f32 v7, v7, v169
        """)
        A(f"v_sub_f32 v6, {fbits(-shift):#x}, v6" if shift else "v_sub_f32 v6, 0, v6")
        A(f"v_sub_f32 v7, {fbits(-shift):#x}, v7" if shift else "v_sub_f32 v7, 0, v7")
    maxtree(S[0],6,True); maxtree(S[1],7,True)
    finish_max(SHIFT)
    A(f"{name}_restart:")
    for b in range(2):
        for r in range(16): A(f"v_mov_b32 v{NM[b]+r}, v{6+b}")
    for b in range(2):
        for r in range(16): A(f"v_mov_b32 v{O[b]+r}, 0")
    for r in range(16): A(f"v_mov_b32 v{S[3]+r}, 0")
    A(f"""
    v_mov_b32 v6, v4
    v_mov_b32 v7, v5
    ds_read_b128 {v(KB[0],4)}, v6
    s_mov_b32 s55, 0
    s_waitcnt lgkmcnt(0)
    {MF} {v(S[0],16)}, {v(KB[0],4)}, {v(Q[0],4)}, {v(NM[0],16)}
    s_nop 7
    """)
    UN=4
    A(".p2align 6")
    A(f"{name}_loop:")
    lb=A.label("nob")
    A(f"""
    s_cmp_eq_u32 s54, 0
    s_cbranch_scc0 {lb}
    s_cmp_eq_u32 s55, 2
    s_cbranch_scc0 {lb}a
    s_waitcnt vmcnt(18)
    s_barrier
    {lb}a:
    s_cmp_eq_u32 s55, 6
    s_cbranch_scc0 {lb}
    s_waitcnt vmcnt(0)
    s_barrier
    {lb}:
    """)
    for t in range(UN):
        for b in range(2):
            u=2*t+b
            cur=S[u%4]; nxt=S[(u+1)%4]; prv=S[(u-1)%4]
            ex=[f"v_exp_f32 v{cur+i}, v{cur+i}" for i in range(16)]
            if b==0:
                kq=KB[t%2]; qq=1; vp=VB[(t-1)%2]; ob=1
                A(f"{MF} {v(nxt,16)}, {v(kq,4)}, {v(Q[1],4)}, {v(NM[1],16)}")
                A(f"ds_read_b128 {v(KB[(t+1)%2],4)}, v6 offset:{(t+1)*1024}")
                A("s_mov_b64 exec, s[52:53]")
                A(f"ds_read_b128 {v(VB[t%2],4)}, v7 offset:{t*1024}")
                A(f"ds_read_b128 {v(VB[t%2]+4,4)}, v7 offset:{t*1024+512}")
                A("s_mov_b64 exec, -1")
            else:
                vp=VB[t%2]; ob=0
                A("s_waitcnt lgkmcnt(0)")
                A(f"{MF} {v(nxt,16)}, {v(KB[(t+1)%2],4)}, {v(Q[0],4)}, {v(NM[0],16)}")
            for e in ex[0:5]: A(e)
            A(f"{SM} {v(O[ob],16)}, {v(vp,4)}, {v(prv,8)}, v3")
            for e in ex[5:10]: A(e)
            A(f"{SM} {v(O[ob],16)}, {v(vp+4,4)}, {v(prv+8,8)}, v3")
            for e in ex[10:16]: A(e)
    A(f"""
    v_add_u32 v6, {UN*1024}, v6
    v_add_u32 v7, {UN*1024}, v7
    s_add_u32 s55, s55, 1
    s_cmp_lt_u32 s55, {64//UN}
    s_cbranch_scc1 {name}_loop
    """)
    vp=VB[(UN-1)%2]
    A(f"{SM} {v(O[1],16)}, {v(vp,4)}, {v(S[3],8)}, v3")
    A(f"{SM} {v(O[1],16)}, {v(vp+4,4)}, {v(S[3]+8,8)}, v3")
    A("s_nop 11")
    A(f"s_cmp_eq_u32 s54, 0")
    A(f"s_cbranch_scc0 {name}_fin")
    A(f"v_add_f32 v6, v{O[0]+8}, v{O[1]+8}")
    for b in range(2):
        for r in range(8): A(f"v_add_f32 v6, |v{O[b]+r}|, v6")
    A(f"""
    v_mov_b32 v7, 0x207
    v_cmp_class_f32 vcc, v6, v7
    s_nop 1
    s_cmp_eq_u64 vcc, 0
    s_cbranch_scc1 {name}_fin
    """) if "forcefb" not in opts else None
    A(f"""
    s_mov_b32 s54, 1
    s_mov_b32 s55, 0
    v_mov_b32 v170, v4
    v_mov_b32 v6, 0xff800000
    v_mov_b32 v7, 0xff800000
    {name}_mx:
    ds_read_b128 {v(KB[0],4)}, v170
    s_waitcnt lgkmcnt(0)
    """)
    for b in range(2): A(f"{MF} {v(S[b],16)}, {v(KB[0],4)}, {v(Q[b],4)}, 0")
    A("s_nop 10")
    maxtree(S[0],6,False); maxtree(S[1],7,False)
    A(f"""
    v_add_u32 v170, 1024, v170
    s_add_u32 s55, s55, 1
    s_cmp_lt_u32 s55, 64
    s_cbranch_scc1 {name}_mx
    """)
    finish_max(0)
    A(f"s_branch {name}_restart")
    A(f"{name}_fin:")
    for b in range(2):
        A(f"v_rcp_f32 v{6+b}, v{O[b]+8}")
    A("s_nop 0")
    for b in range(2):
        for r in range(8): A(f"v_mul_f32 v{O[b]+r}, v{O[b]+r}, v{6+b}")
        for r in range(4): A(f"v_cvt_pk_bf16_f32 v{O[b]+r}, v{O[b]+2*r}, v{O[b]+2*r+1}")
    A(f"""
    s_lshl_b32 s46, s44, 15
    s_lshl_b32 s47, s43, 10
    s_add_u32 s46, s46, s47
    s_add_u32 s46, s46, {OF}
    s_add_u32 s47, s46, 0x8000
    s_nop 0
    buffer_store_dwordx4 {v(O[0],4)}, v4, s[24:27], s46 offen
    buffer_store_dwordx4 {v(O[1],4)}, v4, s[24:27], s47 offen
    s_endpgm
    """)
def ffn(A,name,opts,bars):
    ACC=64; ST=160
    A(f"""
    s_lshl_b32 s43, s41, 2
    s_add_u32 s43, s43, s42
    s_mul_i32 s44, s43, 5958
    s_lshr_b32 s44, s44, 16
    s_mul_i32 s45, s44, 11
    s_sub_u32 s45, s43, s45
    s_lshr_b32 s46, s40, 1
    s_mul_i32 s46, s46, 11
    s_add_u32 s45, s45, s46
    s_cmp_ge_u32 s44, 11
    s_cbranch_scc1 {name}_end
    s_cmp_ge_u32 s45, 43
    s_cbranch_scc1 {name}_end
    s_and_b32 s46, s40, 1
    s_mul_i32 s46, s46, 11
    s_add_u32 s44, s44, s46
    s_mul_i32 s44, s44, 3
    """)
    srd(A,24,20,XN,2*MB); srd(A,28,20,W13F,W13F_SZ); srd(A,32,20,HF,HF_SZ)
    A(f"""
    v_lshlrev_b32 v3, 4, v1
    s_lshl_b32 s46, s44, 15
    v_add_u32 v4, s46, v3
    v_add_u32 v5, 0x8000, v4
    v_add_u32 v6, 0x10000, v4
    s_lshl_b32 s46, s45, 16
    v_add_u32 v7, s46, v3
    """)
    NS=4
    def loads(k):
        b=ST+20*(k%NS)
        if k%4==0: A(f"s_mov_b32 s47, {(k>>2)*4096}")
        if k%2==0: A(f"s_mov_b32 s48, {(k>>1)*4096}")
        A(f"buffer_load_dwordx4 {v(b,4)}, v7, s[28:31], s48 offen offset:{(k&1)*2048}")
        A(f"buffer_load_dwordx4 {v(b+8,4)}, v4, s[24:27], s47 offen offset:{(k&3)*1024}")
        A(f"buffer_load_dwordx4 {v(b+4,4)}, v7, s[28:31], s48 offen offset:{(k&1)*2048+1024}")
        A(f"buffer_load_dwordx4 {v(b+12,4)}, v5, s[24:27], s47 offen offset:{(k&3)*1024}")
        A(f"buffer_load_dwordx4 {v(b+16,4)}, v6, s[24:27], s47 offen offset:{(k&3)*1024}")
    for k in range(NS): loads(k)
    for r in range(96): A(f"v_mov_b32 v{ACC+r}, 0")
    if bars: A("s_barrier")
    for k in range(32):
        if bars and k in (4,16): A("s_barrier")
        b=ST+20*(k%NS)
        A(f"s_waitcnt vmcnt({5*min(NS-1,31-k)})")
        for i in range(3):
            for m in range(2):
                a=ACC+16*(2*i+m)
                A(f"{MF} {v(a,16)}, {v(b+4*m,4)}, {v(b+8+4*i,4)}, {v(a,16)}")
        if k+NS<32: loads(k+NS)
    A(f"""
    s_mul_i32 s46, s44, {86*1024}
    s_lshl_b32 s47, s45, 11
    s_add_u32 s46, s46, s47
    s_mov_b32 s48, {fbits(-math.log2(math.e)):#x}
    s_nop 7
    """)
    for i in range(3):
        g=ACC+32*i; u=g+16
        for r in range(16): A(f"v_mul_f32 v{ST+r}, s48, v{g+r}")
        for r in range(16): A(f"v_exp_f32 v{ST+r}, v{ST+r}")
        for r in range(16): A(f"v_mul_f32 v{g+r}, v{g+r}, v{u+r}")
        for r in range(16): A(f"v_add_f32 v{ST+r}, 1.0, v{ST+r}")
        for r in range(16): A(f"v_rcp_f32 v{ST+r}, v{ST+r}")
        A("s_nop 0")
        for r in range(16): A(f"v_mul_f32 v{g+r}, v{g+r}, v{ST+r}")
        for r in range(8): A(f"v_cvt_pk_bf16_f32 v{g+r}, v{g+2*r}, v{g+2*r+1}")
        A(f"buffer_store_dwordx4 {v(g,4)}, v3, s[32:35], s46 offen")
        A(f"buffer_store_dwordx4 {v(g+4,4)}, v3, s[32:35], s46 offen offset:1024")
        A(f"s_add_u32 s46, s46, {86*1024}")
    A("s_endpgm")
def gen_k2(name,mode,opts):
    A=Asm()
    A(f"""
    s_cmp_ge_u32 s2, 256
    s_cbranch_scc1 {name}_end
    s_load_dwordx2 s[20:21], s[0:1], 72
    v_and_b32 v1, 63, v0
    v_lshrrev_b32 v2, 6, v0
    s_and_b32 s40, s2, 7
    s_lshr_b32 s41, s2, 3
    v_readfirstlane_b32 s42, v2
    s_waitcnt lgkmcnt(0)
    """)
    if mode=="both":
        A(f"""
        s_cmp_ge_u32 s42, 4
        s_cbranch_scc1 {name}_ffn
        """)
        attn(A,name,opts)
        A(f"{name}_ffn:")
        A("s_sub_u32 s42, s42, 4")
        ffn(A,name,opts,True)
    elif mode=="attn": attn(A,name,opts)
    else: ffn(A,name,opts,False)
    A(f"{name}_end:")
    A("s_endpgm")
    return head(name)+A.text(), kd(name,240), (131072 if mode!="ffn" else 0)
```

```python
from asmlib import *
from k2 import fbits, MF
import math
def gen_k3(name,opts):
    A=Asm()
    AS=0+16; AF=80; ST=144; NS=6
    A(f"""
    s_cmp_ge_u32 s2, 256
    s_cbranch_scc1 {name}_end
    s_load_dwordx2 s[4:5], s[0:1], 0
    s_load_dwordx2 s[6:7], s[0:1], 56
    s_load_dwordx2 s[20:21], s[0:1], 72
    v_and_b32 v1, 63, v0
    v_lshrrev_b32 v2, 6, v0
    s_and_b32 s40, s2, 7
    s_lshr_b32 s41, s2, 3
    v_readfirstlane_b32 s42, v2
    s_lshl_b32 s43, s40, 2
    s_lshr_b32 s44, s41, 3
    s_add_u32 s43, s43, s44
    s_and_b32 s44, s41, 7
    v_lshlrev_b32 v3, 4, v1
    s_waitcnt lgkmcnt(0)
    """)
    srd(A,24,20,0,WS_USED); srd(A,28,4,0,2*MB); srd(A,32,6,0,2*MB)
    A(f"""
    s_lshl_b32 s45, s43, 16
    s_lshl_b32 s46, s42, 13
    s_add_u32 s45, s45, s46
    s_add_u32 s45, s45, {OF}
    s_lshl_b32 s47, s44, 16
    s_add_u32 s47, s47, s46
    s_add_u32 s47, s47, {WOF}
    v_add_u32 v4, s45, v3
    v_add_u32 v5, 0x8000, v4
    v_add_u32 v6, s47, v3
    v_add_u32 v7, 0x8000, v6
    s_mul_i32 s46, s42, 22
    s_cmp_eq_u32 s42, 3
    s_cselect_b32 s46, 65, s46
    s_lshl_b32 s46, s46, 10
    s_mul_i32 s45, s43, {2*86*1024}
    s_add_u32 s45, s45, s46
    s_add_u32 s45, s45, {HF}
    s_mul_i32 s47, s44, {2*86*1024}
    s_add_u32 s47, s47, s46
    s_add_u32 s47, s47, {W2F}
    v_add_u32 v8, s45, v3
    v_add_u32 v9, {86*1024}, v8
    v_add_u32 v10, s47, v3
    v_add_u32 v11, {86*1024}, v10
    s_cmp_ge_u32 s42, 2
    s_cselect_b32 s49, 0x40000000, {20*1024}
    """)
    steps=[("o",k) for k in range(8)]+[("h",k) for k in range(22)]
    def loads(i):
        kind,k=steps[i]; b=ST+16*(i%NS)
        a0=4 if kind=="o" else 8
        if kind=="h" and k==21: so="s49"
        else:
            so="s48"
            if k%4==0: A(f"s_mov_b32 s48, {(k>>2)*4096}")
        o=(k&3)*1024
        A(f"buffer_load_dwordx4 {v(b,4)}, v{a0+2}, s[24:27], {so} offen offset:{o}")
        A(f"buffer_load_dwordx4 {v(b+8,4)}, v{a0}, s[24:27], {so} offen offset:{o}")
        A(f"buffer_load_dwordx4 {v(b+4,4)}, v{a0+3}, s[24:27], {so} offen offset:{o}")
        A(f"buffer_load_dwordx4 {v(b+12,4)}, v{a0+1}, s[24:27], {so} offen offset:{o}")
    A(f"""
    v_and_b32 v12, 31, v1
    v_lshlrev_b32 v12, 10, v12
    v_lshrrev_b32 v13, 5, v1
    v_lshl_add_u32 v12, v13, 4, v12
    s_lshl_b32 s50, s43, 16
    s_and_b32 s51, s42, 1
    s_lshl_b32 s51, s51, 15
    s_add_u32 s50, s50, s51
    s_lshl_b32 s51, s44, 7
    s_add_u32 s50, s50, s51
    s_lshr_b32 s51, s42, 1
    s_lshl_b32 s51, s51, 6
    s_add_u32 s50, s50, s51
    s_nop 0
    buffer_load_dwordx4 v[240:243], v12, s[28:31], s50 offen
    buffer_load_dwordx4 v[244:247], v12, s[28:31], s50 offen offset:32
    """)
    for i in range(NS): loads(i)
    for r in range(128): A(f"v_mov_b32 v{16+r}, 0")
    n=len(steps)
    for i in range(n):
        kind,k=steps[i]; b=ST+16*(i%NS); acc=AS if kind=="o" else AF
        A(f"s_waitcnt vmcnt({4*min(NS-1,n-1-i)})")
        for nb in range(2):
            for tb in range(2):
                a=acc+16*(2*nb+tb)
                A(f"{MF} {v(a,16)}, {v(b+4*nb,4)}, {v(b+8+4*tb,4)}, {v(a,16)}")
        if i+NS<n: loads(i+NS)
    A(f"""
    s_lshl_b32 s51, s42, 12
    v_add_u32 v13, s51, v3
    v_add_u32 v14, 0x10000, v13
    s_lshl_b32 s51, s42, 14
    v_add_u32 v4, s51, v3
    v_add_u32 v5, 0x10000, v4
    v_permlane32_swap_b32 v240, v242
    v_permlane32_swap_b32 v241, v243
    v_permlane32_swap_b32 v244, v246
    v_permlane32_swap_b32 v245, v247
    s_nop 3
    """)
    for ai,(acc,ad) in enumerate(((AS,13),(AF,14))):
        for blk in range(4):
            for j in range(4):
                A(f"ds_write_b128 v{ad}, {v(acc+16*blk+4*j,4)} offset:{blk*16384+j*1024}")
    A("s_waitcnt lgkmcnt(0)")
    A("s_barrier")
    for ai,(acc,ad) in enumerate(((AF,5),(AS,4))):
        for src in range(4):
            for j in range(4):
                A(f"ds_read_b128 {v(acc+16*src+4*j,4)}, v{ad} offset:{src*4096+j*1024}")
    A(f"s_mov_b32 s48, {fbits(-math.log2(math.e)):#x}")
    A("s_waitcnt lgkmcnt(15)")
    A("s_waitcnt lgkmcnt(15)")
    def red(acc):
        for r in range(16):
            A(f"v_add_f32 v{acc+r}, v{acc+r}, v{acc+16+r}")
            A(f"v_add_f32 v{acc+32+r}, v{acc+32+r}, v{acc+48+r}")
        for r in range(16): A(f"v_add_f32 v{acc+r}, v{acc+r}, v{acc+32+r}")
    A("s_waitcnt lgkmcnt(0)")
    red(AF)
    T=ST
    for r in range(16): A(f"v_mul_f32 v{T+r}, s48, v{AF+r}")
    for r in range(16): A(f"v_exp_f32 v{T+r}, v{T+r}")
    red(AS)
    for r in range(16): A(f"v_add_f32 v{T+r}, 1.0, v{T+r}")
    for r in range(16): A(f"v_rcp_f32 v{T+r}, v{T+r}")
    for r in range(16): A(f"v_mul_f32 v{AS+r}, v{AS+r}, v{AF+r}")
    for r in range(8):
        A(f"v_lshlrev_b32 v{T+16+2*r}, 16, v{240+r}")
        A(f"v_and_b32 v{T+17+2*r}, 0xffff0000, v{240+r}")
    for r in range(16): A(f"v_fma_f32 v{AS+r}, v{AS+r}, v{T+r}, v{T+16+r}")
    for r in range(8): A(f"v_cvt_pk_bf16_f32 v{AS+r}, v{AS+2*r}, v{AS+2*r+1}")
    A(f"""
    s_nop 1
    v_permlane32_swap_b32 v{AS}, v{AS+2}
    v_permlane32_swap_b32 v{AS+1}, v{AS+3}
    v_permlane32_swap_b32 v{AS+4}, v{AS+6}
    v_permlane32_swap_b32 v{AS+5}, v{AS+7}
    buffer_store_dwordx4 {v(AS,4)}, v12, s[32:35], s50 offen
    buffer_store_dwordx4 {v(AS+4,4)}, v12, s[32:35], s50 offen offset:32
    {name}_end:
    s_endpgm
    """)
    return head(name)+A.text(), kd(name,248), 131072
```

```python
import sys, importlib
from asmlib import *
import k1
P="recurrent_scan__mha_block__glu_gated_swiglu__prompt"
ref=open(f"cdna_kernels/{P}.s.ref").read().split("\n")
hdr=[l for l in ref if l.startswith(";") and "@launch" not in l and "Override" not in l and "grid=ceil" not in l]
ks=[]
def add(name,res,grid,block):
    ks.append((name,res[0],res[1],res[2],grid,block))
add("k1_kernel",k1.gen_k1("k1_kernel"),256,256)
opts=sys.argv[2:]
if "k1only" not in opts:
    import k2, k3
    merged = "sep" not in opts
    if merged:
        add("k2_kernel",k2.gen_k2("k2_kernel","both",opts),256,512)
    else:
        add("k2_kernel",k2.gen_k2("k2_kernel","attn",opts),256,256)
        add("k2f_kernel",k2.gen_k2("k2f_kernel","ffn",opts),256,256)
    if "nok3" not in opts: add("k3_kernel",k3.gen_k3("k3_kernel",opts),256,256)
out="\n".join(hdr)+"\n"
for n,code,d,lds,g,b in ks: out+=f"; @launch kernel={n} grid=({g},1,1) block=({b},1,1) lds={lds}\n"
out+='.amdgcn_target "amdgcn-amd-amdhsa--gfx950"\n'
for n,code,d,lds,g,b in ks: out+=code
for n,code,d,lds,g,b in ks: out+=d
open(sys.argv[1],"w").write(out)
open("launch.txt","w").write(" ".join(f"{n} {g} {b} {lds}" for n,code,d,lds,g,b in ks))
```

```python
class Asm:
    def __init__(self):
        self.L=[]
        self.uid=0
    def __call__(self, s):
        for line in s.strip("\n").split("\n"):
            line=line.strip()
            if not line: continue
            if line.endswith(":") or line.startswith("."): self.L.append(line)
            else: self.L.append("  "+line)
    def label(self, base):
        self.uid+=1
        return f"L_{base}_{self.uid}"
    def text(self): return "\n".join(self.L)+"\n"
def v(a,n=1): return f"v{a}" if n==1 else f"v[{a}:{a+n-1}]"
def s(a,n=1): return f"s{a}" if n==1 else f"s[{a}:{a+n-1}]"
def srd(A, d, base, off, size):
    if off:
        A(f"s_add_u32 s{d}, s{base}, {off:#x}")
        A(f"s_addc_u32 s{d+1}, s{base+1}, 0")
    else:
        A(f"s_mov_b32 s{d}, s{base}")
        A(f"s_mov_b32 s{d+1}, s{base+1}")
    A(f"s_mov_b32 s{d+2}, {size:#x}")
    A(f"s_mov_b32 s{d+3}, 0x20000")
def kd(name, nv, ns=100):
    return f""".section .rodata,"a"
.p2align 6
.amdhsa_kernel {name}
  .amdhsa_next_free_vgpr {nv}
  .amdhsa_next_free_sgpr {ns}
  .amdhsa_accum_offset {(nv+3)//4*4}
  .amdhsa_group_segment_fixed_size 0
  .amdhsa_kernarg_size 80
  .amdhsa_user_sgpr_count 2
  .amdhsa_user_sgpr_kernarg_segment_ptr 1
  .amdhsa_system_sgpr_workgroup_id_x 1
.end_amdhsa_kernel
"""
def head(name):
    return f""".text
.globl {name}
.p2align 8
.type {name},@function
{name}:
"""
MB=1<<20
QF=0; KF=2*MB; VF=4*MB; XN=6*MB; OF=8*MB
W13F=10*MB; W13F_SZ=43*32*2*1024
W2F=13*MB; W2F_SZ=16*86*1024
WOF=15*MB; WOF_SZ=16*32*1024
HF=16*MB; HF_SZ=64*86*1024
GF=22*MB
FLG=24*MB
WS_USED=26*MB
STAMP=25*MB
PROF=False
def stamp(A, kid, idx, wsreg=20):
    if not PROF: return
    A(f"s_memrealtime s[{80+2*idx}:{81+2*idx}]")
    if idx==0: A("s_memtime s[92:93]")
    if idx==5: A("s_memtime s[94:95]")
def stamp_out(A, kid, n, wave_s, wsreg=20):
    if not PROF: return
    A("s_waitcnt lgkmcnt(0)")
    A(f"s_lshl_b32 s78, s2, 3")
    A(f"s_add_u32 s78, s78, s{wave_s}")
    A(f"s_lshl_b32 s78, s78, 5")
    A(f"s_add_u32 s78, s78, {STAMP+kid*65536}")
    A(f"v_mov_b32 v2, s78")
    for i in range(8):
        A(f"v_mov_b32 v0, s{80+2*i}")
        A(f"global_store_dword v2, v0, s[{wsreg}:{wsreg+1}] offset:{4*i}")
```

```python
from asmlib import *
import asmlib
import math, struct
def gen_k1(name,opts=()):
    A=Asm()
    XS=0; KS=1088; TBS=32*KS; WR=2*TBS; SLOT=24576; FR=WR+3*SLOT
    FI=int(([o[4:] for o in opts if o.startswith("k1fi")]+["1"])[0])
    LNI=int(([o[4:] for o in opts if o.startswith("k1li")]+["2"])[0])
    A(f"""
    s_cmp_ge_u32 s2, 256
    s_cbranch_scc1 {name}_end
    s_load_dwordx4 s[4:7], s[0:1], 0
    s_load_dwordx4 s[12:15], s[0:1], 32
    s_load_dwordx2 s[20:21], s[0:1], 72
    v_and_b32 v1, 63, v0
    v_lshrrev_b32 v2, 6, v0
    s_and_b32 s40, s2, 7
    s_lshr_b32 s41, s2, 3
    v_readfirstlane_b32 s42, v2
    s_lshr_b32 s43, s40, 1
    s_lshl_b32 s43, s43, 3
    s_lshr_b32 s73, s41, 2
    s_add_u32 s43, s43, s73
    s_and_b32 s44, s40, 1
    s_lshl_b32 s44, s44, 2
    s_and_b32 s45, s41, 3
    s_add_u32 s44, s44, s45
    v_lshrrev_b32 v3, 3, v1
    v_and_b32 v5, 7, v1
    v_lshlrev_b32 v4, 10, v3
    v_lshl_add_u32 v4, v5, 4, v4
    s_lshl_b32 s45, s43, 16
    s_lshl_b32 s46, s42, 13
    s_add_u32 s45, s45, s46
    """)
    if "k1nostag" in opts: A("s_mov_b32 s73, 0")
    stamp(A,0,0)
    A("s_waitcnt lgkmcnt(0)")
    srd(A,24,4,0,2048*1024)
    for i in range(8): A(f"buffer_load_dwordx4 {v(64+4*i,4)}, v4, s[24:27], s45 offen offset:{128*i}")
    srd(A,36,20,0,WS_USED)
    A(f"""
    s_lshr_b32 s46, s42, 2
    s_mul_i32 s46, s46, {TBS}
    s_and_b32 s47, s42, 3
    s_lshl_b32 s47, s47, 7
    s_add_u32 s46, s46, s47
    v_mul_u32_u24 v6, 544, v5
    v_lshl_add_u32 v6, v3, 4, v6
    v_add_u32 v6, s46, v6
    v_mov_b32 v36, 0xffff0000
    s_cmp_ge_u32 s42, 4
    s_cbranch_scc1 {name}_help
    """)
    def layernorm(nafter,dm=()):
        dm=list(dm); nd=0
        A("v_mov_b32 v48, 0\nv_mov_b32 v49, 0\nv_mov_b32 v50, 0\nv_mov_b32 v51, 0")
        for i in range(8):
            A(f"s_waitcnt vmcnt({nafter+7-i+nd})")
            if dm and i>=LNI:
                for q in range(2 if i<7 else len(dm)): A(dm.pop(0)); nd+=1
            for j in range(4):
                r=4*i+j
                A(f"""
                v_lshlrev_b32 v{128+2*r}, 16, v{64+r}
                v_and_b32 v{129+2*r}, v36, v{64+r}
                v_add_f32 v48, v48, v{128+2*r}
                v_add_f32 v49, v49, v{129+2*r}
                v_fmac_f32 v50, v{128+2*r}, v{128+2*r}
                v_fmac_f32 v51, v{129+2*r}, v{129+2*r}
                """)
        A("v_add_f32 v48, v48, v49\nv_add_f32 v50, v50, v51\ns_nop 1")
        for d in ("quad_perm:[1,0,3,2]","quad_perm:[2,3,0,1]","row_half_mirror"):
            A(f"v_add_f32_dpp v48, v48, v48 {d} row_mask:0xf bank_mask:0xf")
            A(f"v_add_f32_dpp v50, v50, v50 {d} row_mask:0xf bank_mask:0xf")
            A("s_nop 1")
        A("""
        v_mul_f32 v48, 0x3b000000, v48
        v_mul_f32 v50, 0x3b000000, v50
        v_fma_f32 v50, -v48, v48, v50
        v_max_f32 v50, 0, v50
        v_add_f32 v50, 0x3727c5ac, v50
        v_rsq_f32 v49, v50
        s_nop 0
        v_mul_f32 v50, v48, v49
        v_sub_f32 v50, 0, v50
        """)
        for i in range(8):
            for j in range(4):
                r=4*i+j
                A(f"v_fma_f32 v{128+2*r}, v{128+2*r}, v49, v50")
                A(f"v_fma_f32 v{129+2*r}, v{129+2*r}, v49, v50")
            for j in range(4):
                r=4*i+j
                A(f"v_cvt_pk_bf16_f32 v{64+r}, v{128+2*r}, v{129+2*r}")
            A(f"ds_write_b128 v6, {v(64+4*i,4)} offset:{4*KS*i}")
    A(f"""
    s_lshr_b32 s46, s42, 1
    s_mul_i32 s47, s46, {TBS}
    s_and_b32 s48, s42, 1
    v_and_b32 v11, 31, v1
    v_lshrrev_b32 v12, 5, v1
    v_mul_u32_u24 v24, 544, v12
    v_lshl_add_u32 v24, v11, 4, v24
    v_add_u32 v24, s47, v24
    v_bfe_u32 v13, v1, 2, 2
    v_lshl_add_u32 v14, v12, 3, v13
    v_mul_u32_u24 v14, 0x180, v14
    v_lshrrev_b32 v13, 1, v13
    v_xor_b32 v13, s48, v13
    v_lshl_add_u32 v14, v13, 6, v14
    v_bfe_u32 v13, v1, 4, 1
    v_lshl_add_u32 v14, v13, 5, v14
    v_and_b32 v13, 3, v1
    v_lshl_add_u32 v28, v13, 3, v14
    v_lshlrev_b32 v2, 4, v1
    """)
    layernorm(0)
    for r in range(96,144): A(f"v_mov_b32 v{r}, 0")
    XF=[40,44]; WF=[8,52]
    AQ,AK,AV=96,112,128
    def reads(st,buf):
        A(f"ds_read_b128 {v(XF[buf],4)}, v30 offset:{st*KS}")
        for bq in range(3):
            for p in range(2):
                A(f"ds_read_b64_tr_b16 {v(WF[buf]+4*bq+2*p,2)}, v34 offset:{st*6144+p*1536+bq*128}")
    def newchunk(c):
        A(f"s_add_u32 s74, s73, {c}")
        A(f"s_and_b32 s74, s74, 7")
        A(f"s_mul_i32 s74, s74, {4*KS}")
        A(f"v_add_u32 v34, {WR+(c%3)*SLOT}, v28")
        A(f"v_add_u32 v30, s74, v24")
        if c==0: A("s_waitcnt lgkmcnt(0)")
        if c==0: stamp(A,0,1)
        A("s_barrier")
        if c in (0,4): stamp(A,0,{0:2,4:3}[c])
        reads(0,0)
    newchunk(0)
    for c in range(8):
        for st in range(4):
            b=st&1
            if st<3:
                reads(st+1,b^1)
                A("s_waitcnt lgkmcnt(7)")
            else:
                A("s_waitcnt lgkmcnt(0)")
                if c<7: newchunk(c+1)
            x=XF[b]; w=WF[b]
            A(f"v_mfma_f32_32x32x16_bf16 {v(AQ,16)}, {v(w,4)}, {v(x,4)}, {v(AQ,16)}")
            A(f"v_mfma_f32_32x32x16_bf16 {v(AK,16)}, {v(w+4,4)}, {v(x,4)}, {v(AK,16)}")
            A(f"v_mfma_f32_32x32x16_bf16 {v(AV,16)}, {v(x,4)}, {v(w+8,4)}, {v(AV,16)}")
    stamp(A,0,4)
    qsb=struct.unpack("<I",struct.pack("<f",0.25*math.log2(math.e)))[0]
    A(f"""
    s_lshl_b32 s54, s43, 1
    s_add_u32 s54, s54, s46
    s_lshl_b32 s55, s44, 1
    s_add_u32 s55, s55, s48
    s_lshl_b32 s55, s55, 17
    s_lshl_b32 s56, s54, 10
    s_add_u32 s55, s55, s56
    s_add_u32 s56, s55, 0x10000
    s_add_u32 s57, s55, {KF}
    s_add_u32 s58, s56, {KF}
    s_mov_b32 s59, {qsb:#x}
    v_and_b32 v11, 0x33, v1
    v_bfe_u32 v13, v1, 2, 1
    v_lshl_or_b32 v11, v13, 3, v11
    v_bfe_u32 v13, v1, 3, 1
    v_lshl_or_b32 v11, v13, 2, v11
    v_lshlrev_b32 v11, 4, v11
    v_and_b32 v12, 15, v1
    v_lshrrev_b32 v13, 5, v1
    v_lshl_add_u32 v12, v13, 4, v12
    v_lshlrev_b32 v12, 4, v12
    v_bfe_u32 v13, v1, 4, 1
    v_lshl_add_u32 v12, v13, 16, v12
    """)
    for r in range(16): A(f"v_mul_f32 v{AQ+r}, s59, v{AQ+r}")
    for r in range(8): A(f"v_cvt_pk_bf16_f32 v{AQ+r}, v{AQ+2*r}, v{AQ+2*r+1}")
    A(f"buffer_store_dwordx4 {v(AQ,4)}, v2, s[36:39], s55 offen")
    A(f"buffer_store_dwordx4 {v(AQ+4,4)}, v2, s[36:39], s56 offen")
    for r in range(8): A(f"v_cvt_pk_bf16_f32 v{AK+r}, v{AK+2*r}, v{AK+2*r+1}")
    A(f"buffer_store_dwordx4 {v(AK,4)}, v11, s[36:39], s57 offen")
    A(f"buffer_store_dwordx4 {v(AK+4,4)}, v11, s[36:39], s58 offen")
    A(f"s_add_u32 s55, s55, {VF}")
    for r in range(8): A(f"v_cvt_pk_bf16_f32 v{AV+r}, v{AV+2*r}, v{AV+2*r+1}")
    A(f"buffer_store_dwordx4 {v(AV,4)}, v12, s[36:39], s55 offen")
    A(f"buffer_store_dwordx4 {v(AV+4,4)}, v12, s[36:39], s55 offen offset:512")
    if asmlib.PROF: A("s_waitcnt vmcnt(0)")
    stamp(A,0,5); stamp_out(A,0,6,42)
    A("s_endpgm")
    A(f"{name}_help:")
    A("s_sub_u32 s42, s42, 4")
    srd(A,28,6,0,512*3072)
    A(f"""
    s_mov_b32 s46, 0xAAAB
    s_mul_i32 s45, s42, 49152
    s_lshl_b32 s48, s44, 7
    s_mul_i32 s50, s42, 6144
    s_add_u32 s50, s50, {WR}
    """)
    def wcalc():
        for j in range(3):
            A(f"""
            v_add_u32 v16, {64*j}, v1
            v_mul_lo_u32 v17, v16, s46
            v_lshrrev_b32 v17, 20, v17
            v_mul_u32_u24 v18, 24, v17
            v_sub_u32 v18, v16, v18
            v_lshrrev_b32 v19, 2, v18
            v_bfe_u32 v16, v17, 1, 1
            v_xor_b32 v19, v19, v16
            v_mul_u32_u24 v17, 0xc00, v17
            v_lshrrev_b32 v16, 1, v19
            v_lshl_add_u32 v17, v16, 10, v17
            v_and_b32 v19, 1, v19
            v_lshl_add_u32 v17, v19, 6, v17
            v_and_b32 v18, 3, v18
            v_lshl_add_u32 v17, v18, 4, v17
            v_add_u32 v{20+j}, s45, v17
            v_add_u32 v{23+j}, 0x6000, v{20+j}
            """)
    def dma_list(c):
        sl=(c%3)*SLOT; L=[]
        for j in range(6):
            t=""
            if j==0: t=f"s_add_u32 s74, s73, {c}\ns_and_b32 s74, s74, 7\ns_mul_i32 s74, s74, 196608\ns_add_u32 s51, s48, s74\n"
            L.append(t+f"s_add_u32 m0, s50, {sl+j*1024}\ns_nop 0\nbuffer_load_dwordx4 v{20+j}, s[28:31], s51 offen lds")
        return L
    def issue_chunk(c):
        for t in dma_list(c): A(t)
    def frag_calc():
        A("""
        s_lshl_b32 s52, s2, 2
        s_add_u32 s52, s52, s42
        v_lshrrev_b32 v14, 2, v1
        v_and_b32 v15, 3, v1
        v_lshlrev_b32 v15, 4, v15
        v_mul_u32_u24 v14, 2752, v14
        v_add_u32 v26, v14, v15
        s_mul_i32 s53, s42, 3072
        """)
        A(f"s_add_u32 s53, s53, {FR}")
        srd(A,32,12,0,512*2752); srd(A,8,14,0,512*2752)
        for j in range(3):
            A(f"""
            s_add_u32 s54, s52, {1024*j}
            s_min_u32 s54, s54, 2751
            s_cmp_ge_u32 s54, 1376
            s_cselect_b32 s55, 1, 0
            s_mul_i32 s56, s55, 1376
            s_sub_u32 s56, s54, s56
            s_mul_i32 s57, s56, 6097
            s_lshr_b32 s57, s57, 18
            s_mul_i32 s58, s57, 43
            s_sub_u32 s58, s56, s58
            s_mul_i32 s56, s57, {16*2752}
            s_lshl_b32 s70, s58, 6
            s_add_u32 s{64+j}, s56, s70
            s_lshl_b32 s70, s58, 16
            s_lshl_b32 s57, s57, 11
            s_add_u32 s70, s70, s57
            s_mov_b32 s{67+j}, s55
            s_lshl_b32 s55, s55, 10
            s_add_u32 s70, s70, s55
            s_add_u32 s{60+j}, s70, {W13F}
            """)
    def frag_issue():
        for j in range(3):
            l=A.label("fm")
            A(f"""
            s_add_u32 m0, s53, {j*1024}
            s_cmp_eq_u32 s{67+j}, 0
            s_cbranch_scc1 {l}
            buffer_load_dwordx4 v26, s[8:11], s{64+j} offen lds
            s_branch {l}x
            {l}:
            buffer_load_dwordx4 v26, s[32:35], s{64+j} offen lds
            {l}x:
            """)
    def frag_fin():
        A("""
        v_bfe_u32 v13, v1, 2, 2
        v_bfe_u32 v14, v1, 4, 1
        v_lshlrev_b32 v13, 6, v13
        v_lshl_add_u32 v13, v14, 5, v13
        v_and_b32 v14, 3, v1
        v_lshl_add_u32 v13, v14, 3, v13
        v_lshrrev_b32 v14, 5, v1
        v_lshl_add_u32 v13, v14, 9, v13
        v_add_u32 v13, s53, v13
        """)
        for j in range(3):
            for p in range(2): A(f"ds_read_b64_tr_b16 {v(112+4*j+2*p,2)}, v13 offset:{j*1024+p*256}")
        for j in range(3):
            A(f"s_waitcnt lgkmcnt({4-2*j})")
            A(f"buffer_store_dwordx4 {v(112+4*j,4)}, v2, s[36:39], s{60+j} offen")
    FE="k1fe" in opts
    wcalc()
    if FE: frag_calc(); frag_issue()
    stamp(A,0,1)
    dm=dma_list(0)+dma_list(1)
    layernorm(3 if FE else 0,dm)
    A("s_waitcnt vmcnt(6) lgkmcnt(0)")
    stamp(A,0,2)
    A("s_barrier")
    issue_chunk(2)
    A(f"""
    s_lshr_b32 s46, s42, 1
    s_and_b32 s47, s42, 1
    s_lshl_b32 s47, s47, 1
    s_lshl_b32 s75, s44, 2
    s_add_u32 s47, s47, s75
    s_mul_i32 s75, s46, {TBS}
    s_mul_i32 s76, s47, {KS}
    s_add_u32 s75, s75, s76
    v_and_b32 v16, 31, v1
    v_lshrrev_b32 v17, 5, v1
    v_mul_u32_u24 v17, 544, v17
    v_lshl_add_u32 v17, v16, 4, v17
    v_add_u32 v17, s75, v17
    ds_read_b128 v[64:67], v17
    ds_read_b128 v[68:71], v17 offset:{KS}
    s_lshl_b32 s75, s43, 1
    s_add_u32 s75, s75, s46
    s_lshl_b32 s75, s75, 15
    s_lshl_b32 s47, s47, 10
    s_add_u32 s75, s75, s47
    s_add_u32 s75, s75, {XN}
    """)
    for c in range(1,8):
        A(f"s_waitcnt vmcnt({(6 if c<7 else 0)+(3 if c>5 and not FE else 0)})")
        A("s_barrier")
        if c+2<8: issue_chunk(c+2)
        if c==1 and not FE: frag_calc()
        if c==5 and not FE: frag_issue()
    A("""
    v_lshlrev_b32 v2, 4, v1
    s_waitcnt vmcnt(0) lgkmcnt(0)
    buffer_store_dwordx4 v[64:67], v2, s[36:39], s75 offen
    buffer_store_dwordx4 v[68:71], v2, s[36:39], s75 offen offset:1024
    """)
    stamp(A,0,3)
    frag_fin()
    stamp(A,0,4)
    if asmlib.PROF:
        A("s_waitcnt vmcnt(0)")
        A("s_add_u32 s42, s42, 4")
    stamp(A,0,5); stamp_out(A,0,6,42)
    A(f"{name}_end:")
    A("s_endpgm")
    return head(name)+A.text(), kd(name,200), FR+12288
```

```python
from asmlib import *
import asmlib
import struct, math
def fbits(x): return struct.unpack("<I",struct.pack("<f",x))[0]
SHIFT=80.0
MF="v_mfma_f32_32x32x16_bf16"; SM="v_smfmac_f32_32x32x32_bf16"
def attn(A,name,opts):
    Q=8; KB=[12,16]; VB=[20,28]; NM=36; O=52; S=[68,84,100,116]; T=132
    CB=int(([o[2:] for o in opts if o.startswith("cb")]+["5"])[0])
    srd(A,24,20,0,WS_USED)
    A(f"""
    s_lshl_b32 s43, s40, 2
    s_lshr_b32 s44, s41, 3
    s_add_u32 s43, s43, s44
    s_and_b32 s44, s41, 7
    s_lshl_b32 s44, s44, 3
    s_add_u32 s44, s44, s42
    v_lshlrev_b32 v4, 4, v1
    s_lshl_b32 s46, s43, 16
    s_lshl_b32 s47, s44, 10
    s_add_u32 s47, s47, s46
    s_add_u32 s48, s46, {KF}
    buffer_load_dwordx4 v[8:11], v4, s[24:27], s47 offen
    s_add_u32 s49, s46, {VF}
    """)
    def dma(base,n):
        A(f"s_mul_i32 s50, s42, {n*1024}")
        for reg,lds in ((48,0),(49,65536)):
            A(f"s_add_u32 s51, s50, {base}")
            A(f"s_add_u32 m0, s51, {lds}")
            A(f"s_add_u32 s51, s51, s{reg}")
            for j in range(n):
                A(f"buffer_load_dwordx4 v4, s[24:27], s51 offen offset:{j*1024} lds")
    dma(0,2); dma(16384,2)
    A(f"""
    v_mov_b32 v3, 0xdddd
    v_and_b32 v5, 15, v1
    v_lshrrev_b32 v6, 5, v1
    v_lshl_add_u32 v5, v6, 4, v5
    v_lshlrev_b32 v5, 4, v5
    v_add_u32 v5, 0x10000, v5
    s_mov_b32 s52, 0x0000ffff
    s_mov_b32 s53, 0x0000ffff
    s_mov_b32 s54, 0
    s_mov_b32 s57, 7
    s_mov_b32 s58, {(1<<1)|(1<<CB)}
    s_mov_b32 s59, {(1<<3)|(1<<7)}
    v_mov_b32 v{T+2}, 0x20000
    v_mov_b32 v{T+3}, 0
    ds_write_b32 v{T+2}, v{T+3}
    """)
    for r in range(20,36): A(f"v_mov_b32 v{r}, 0x3f803f80")
    A("s_waitcnt vmcnt(4) lgkmcnt(0)")
    A(f"v_mov_b32 v{T+3}, 1")
    A("s_barrier")
    stamp(A,1,1)
    A(f"ds_read_b128 {v(KB[0],4)}, v4")
    A("s_waitcnt lgkmcnt(0)")
    A(f"{MF} {v(S[0],16)}, {v(KB[0],4)}, {v(Q,4)}, 0")
    A("s_nop 11")
    def maxtree(src,dst,first):
        for i in range(8):
            if i==0 and first: A(f"v_max_f32 v{dst}, v{src}, v{src+1}")
            else: A(f"v_max3_f32 v{dst}, v{src+2*i}, v{src+2*i+1}, v{dst}")
    def finish_max(shift):
        A(f"""
        v_mov_b32 v{T}, v6
        s_nop 1
        v_permlane32_swap_b32 v6, v{T}
        s_nop 1
        v_max_f32 v6, v6, v{T}
        """)
        A(f"v_sub_f32 v6, {fbits(-shift):#x}, v6" if shift else "v_sub_f32 v6, 0, v6")
    maxtree(S[0],6,True)
    finish_max(SHIFT)
    A(f"{name}_restart:")
    A(f"ds_read_b128 {v(KB[0],4)}, v4")
    A(f"ds_read_b128 {v(KB[1],4)}, v4 offset:1024")
    for r in range(16): A(f"v_mov_b32 v{NM+r}, v6")
    for r in range(16): A(f"v_mov_b32 v{O+r}, 0")
    for r in range(16): A(f"v_mov_b32 v{S[3]+r}, 0")
    A(f"""
    v_mov_b32 v6, v4
    v_mov_b32 v7, v5
    s_mov_b32 s55, 0
    s_waitcnt lgkmcnt(0)
    {MF} {v(S[0],16)}, {v(KB[0],4)}, {v(Q,4)}, {v(NM,16)}
    s_nop 7
    """)
    UN=4
    A(".p2align 6")
    A(f"{name}_loop:")
    lb=A.label("nob")
    A(f"""
    s_cmp_gt_u32 s55, s57
    s_cbranch_scc1 {lb}
    s_bitcmp1_b32 s58, s55
    s_cbranch_scc0 {lb}c
    s_waitcnt vmcnt(0)
    s_mov_b64 exec, 1
    ds_add_u32 v{T+2}, v{T+3}
    s_mov_b64 exec, -1
    s_cmp_eq_u32 s55, 1
    s_cbranch_scc0 {lb}
    {"s_memrealtime s[84:85]" if asmlib.PROF else ""}
    """)
    dma(32768,4)
    A(f"""
    s_branch {lb}
    {lb}c:
    s_bitcmp1_b32 s59, s55
    s_cbranch_scc0 {lb}
    s_lshl_b32 s56, s55, 1
    s_add_u32 s56, s56, 2
    {lb}s:
    ds_read_b32 v{T+1}, v{T+2}
    s_waitcnt lgkmcnt(0)
    v_readfirstlane_b32 s60, v{T+1}
    s_cmp_ge_u32 s60, s56
    s_cbranch_scc0 {lb}s
    {"s_memrealtime s[86:87]" if asmlib.PROF else ""}
    {lb}:
    """)
    for t in range(UN):
        cur=S[t%4]; nxt=S[(t+1)%4]; prv=S[(t-1)%4]; vp=VB[(t-1)%2]
        ex=[f"v_exp_f32 v{cur+i}, v{cur+i}" for i in range(16)]
        A("s_waitcnt lgkmcnt(0)")
        A(f"{MF} {v(nxt,16)}, {v(KB[(t+1)%2],4)}, {v(Q,4)}, {v(NM,16)}")
        A(f"ds_read_b128 {v(KB[t%2],4)}, v6 offset:{(t+2)*1024}")
        A("s_mov_b64 exec, s[52:53]")
        A(f"ds_read_b128 {v(VB[t%2],4)}, v7 offset:{t*1024}")
        A(f"ds_read_b128 {v(VB[t%2]+4,4)}, v7 offset:{t*1024+512}")
        A("s_mov_b64 exec, -1")
        for e in ex[0:5]: A(e)
        A(f"{SM} {v(O,16)}, {v(vp,4)}, {v(prv,8)}, v3")
        for e in ex[5:10]: A(e)
        A(f"{SM} {v(O,16)}, {v(vp+4,4)}, {v(prv+8,8)}, v3")
        for e in ex[10:16]: A(e)
    A(f"""
    v_add_u32 v6, {UN*1024}, v6
    v_add_u32 v7, {UN*1024}, v7
    s_add_u32 s55, s55, 1
    s_cmp_lt_u32 s55, {64//UN}
    s_cbranch_scc1 {name}_loop
    s_waitcnt lgkmcnt(0)
    """)
    vp=VB[(UN-1)%2]
    A(f"{SM} {v(O,16)}, {v(vp,4)}, {v(S[3],8)}, v3")
    A(f"{SM} {v(O,16)}, {v(vp+4,4)}, {v(S[3]+8,8)}, v3")
    A("s_nop 11")
    stamp(A,1,4)
    A(f"s_cmp_eq_u32 s54, 0")
    A(f"s_cbranch_scc0 {name}_fin")
    A(f"v_add_f32 v6, |v{O}|, v{O+8}")
    for r in range(1,8): A(f"v_add_f32 v6, |v{O+r}|, v6")
    A(f"""
    v_mov_b32 v7, 0x207
    v_cmp_class_f32 vcc, v6, v7
    s_nop 1
    s_cmp_eq_u64 vcc, 0
    s_cbranch_scc1 {name}_fin
    """) if "forcefb" not in opts else None
    A(f"""
    s_mov_b32 s54, 1
    s_mov_b32 s58, 0
    s_mov_b32 s59, 0
    s_mov_b32 s55, 0
    v_mov_b32 v{T+1}, v4
    v_mov_b32 v6, 0xff800000
    {name}_mx:
    ds_read_b128 {v(KB[0],4)}, v{T+1}
    s_waitcnt lgkmcnt(0)
    {MF} {v(S[0],16)}, {v(KB[0],4)}, {v(Q,4)}, 0
    s_nop 11
    """)
    maxtree(S[0],6,False)
    A(f"""
    v_add_u32 v{T+1}, 1024, v{T+1}
    s_add_u32 s55, s55, 1
    s_cmp_lt_u32 s55, 64
    s_cbranch_scc1 {name}_mx
    """)
    finish_max(0)
    A(f"s_branch {name}_restart")
    A(f"{name}_fin:")
    A(f"v_rcp_f32 v6, v{O+8}")
    A(f"""
    s_lshl_b32 s46, s44, 15
    s_lshl_b32 s47, s43, 10
    s_add_u32 s46, s46, s47
    s_add_u32 s46, s46, {OF}
    """)
    for r in range(8): A(f"v_mul_f32 v{O+r}, v{O+r}, v6")
    for r in range(4): A(f"v_cvt_pk_bf16_f32 v{O+r}, v{O+2*r}, v{O+2*r+1}")
    A(f"buffer_store_dwordx4 {v(O,4)}, v4, s[24:27], s46 offen")
    if asmlib.PROF: A("s_waitcnt vmcnt(0)")
    stamp(A,1,5)
    if asmlib.PROF:
        A(f"s_cmp_ge_u32 s42, 4\ns_cbranch_scc1 {name}_end")
    stamp_out(A,1,6,42)
    A("s_endpgm")
def ffn(A,name,opts,bars):
    ACC=8; XS=104; ST=104; FD=144
    A(f"""
    s_load_dwordx2 s[16:17], s[0:1], 48
    s_load_dwordx2 s[8:9], s[0:1], 16
    s_lshl_b32 s43, s41, 2
    s_add_u32 s43, s43, s42
    s_mul_i32 s44, s43, 5958
    s_lshr_b32 s44, s44, 16
    s_mul_i32 s45, s44, 11
    s_sub_u32 s45, s43, s45
    s_lshr_b32 s46, s40, 1
    s_mul_i32 s46, s46, 11
    s_add_u32 s45, s45, s46
    v_lshlrev_b32 v3, 4, v1
    s_cmp_ge_u32 s44, 11
    s_cbranch_scc1 {name}_idle
    s_cmp_ge_u32 s45, 43
    s_cbranch_scc1 {name}_idle
    s_and_b32 s46, s40, 1
    s_mul_i32 s46, s46, 11
    s_add_u32 s44, s44, s46
    s_mul_i32 s44, s44, 3
    s_lshl_b32 s58, s44, 15
    s_lshl_b32 s46, s45, 16
    v_add_u32 v7, s46, v3
    v_add_u32 v4, s58, v3
    v_add_u32 v5, 0x8000, v4
    v_add_u32 v6, 0x10000, v4
    s_mov_b32 s47, 0
    s_mov_b32 s48, 0
    """)
    srd(A,24,20,XN,2*MB); srd(A,32,20,HF,HF_SZ); srd(A,28,20,W13F,W13F_SZ)
    def frag_issue():
        A("s_waitcnt lgkmcnt(0)")
        A("""
        s_lshl_b32 s52, s2, 2
        s_add_u32 s52, s52, s42
        v_lshrrev_b32 v4, 5, v1
        v_and_b32 v5, 31, v1
        v_lshlrev_b32 v5, 1, v5
        v_lshl_add_u32 v4, v4, 12, v5
        v_add_u32 v5, 0x2000, v4
        s_mov_b32 s67, 0x20000
        """)
        for j in range(2):
            A(f"""
            s_add_u32 s55, s52, {1024*j}
            s_min_u32 s55, s55, 1887
            s_mov_b32 s66, {1376*1024}
            s_mov_b32 s71, {86*1024}
            s_mov_b32 s72, {W2F}
            s_cmp_ge_u32 s55, 1376
            s_cselect_b32 s64, s8, s16
            s_cselect_b32 s65, s9, s17
            s_cselect_b32 s66, {512*1024}, s66
            s_cselect_b32 s56, 1376, 0
            s_cselect_b32 s71, {32*1024}, s71
            s_cselect_b32 s72, {WOF}, s72
            s_sub_u32 s55, s55, s56
            s_lshr_b32 s68, s55, 4
            s_and_b32 s69, s55, 15
            s_lshl_b32 s56, s68, 14
            s_lshl_b32 s70, s69, 6
            s_add_u32 s56, s56, s70
            s_mul_i32 s70, s69, s71
            s_lshl_b32 s68, s68, 10
            s_add_u32 s70, s70, s68
            s_add_u32 s{60+j}, s70, s72
            """)
            for e in range(8):
                A(f"buffer_load_ushort v{FD+8*j+e}, v{4+(e>>2)}, s[64:67], s56 offen offset:{(e&3)*1024}")
    def frag_fin():
        srd(A,64,20,0,WS_USED)
        A("s_waitcnt vmcnt(0)")
        for j in range(2):
            for e in range(4): A(f"v_lshl_or_b32 v{FD+8*j+e}, v{FD+8*j+2*e+1}, 16, v{FD+8*j+2*e}")
            A(f"buffer_store_dwordx4 {v(FD+8*j,4)}, v3, s[64:67], s{60+j} offen")
    NS=3
    def loads(k):
        b=XS+20*(k%NS)
        A(f"""
        buffer_load_dwordx4 {v(b,4)}, v7, s[28:31], s48 offen
        buffer_load_dwordx4 {v(b+8,4)}, v4, s[24:27], s47 offen
        buffer_load_dwordx4 {v(b+4,4)}, v7, s[28:31], s48 offen offset:1024
        s_add_u32 s48, s48, 2048
        buffer_load_dwordx4 {v(b+12,4)}, v5, s[24:27], s47 offen
        buffer_load_dwordx4 {v(b+16,4)}, v6, s[24:27], s47 offen
        s_add_u32 s47, s47, 1024
        """)
    def mm(k):
        b=XS+20*(k%NS)
        for i in range(3):
            for m in range(2):
                a=ACC+16*(2*i+m)
                A(f"{MF} {v(a,16)}, {v(b+4*m,4)}, {v(b+8+4*i,4)}, {v(a,16)}")
    for r in range(96): A(f"v_mov_b32 v{ACC+r}, 0")
    if "ffnearly" not in opts: A("s_barrier")
    for k in range(NS): loads(k)
    if "ffnearly" in opts: A("s_barrier")
    A(f"""
    s_mov_b32 s55, 0
    {name}_floop:
    """)
    for k in range(NS):
        A(f"s_waitcnt vmcnt({5*(NS-1)})")
        if asmlib.PROF and k==0: A(f"s_cmp_eq_u32 s55, 0\ns_cbranch_scc0 {name}_ps\ns_memrealtime s[82:83]\n{name}_ps:")
        mm(k); loads(k+NS)
    A(f"""
    s_add_u32 s55, s55, 1
    s_cmp_lt_u32 s55, 9
    s_cbranch_scc1 {name}_floop
    """)
    stamp(A,1,2)
    for k in range(27,32):
        A(f"s_waitcnt vmcnt({5*min(NS-1,31-k)})")
        mm(k)
        if k+NS<32: loads(k+NS)
    if "noeprio" not in opts: A("s_setprio 2")
    stamp(A,1,3)
    frag_issue()
    A(f"""
    s_mul_i32 s46, s44, {86*1024}
    s_lshl_b32 s47, s45, 11
    s_add_u32 s46, s46, s47
    s_mov_b32 s48, {fbits(-math.log2(math.e)):#x}
    s_nop 7
    """)
    stamp(A,1,4)
    for i in range(3):
        g=ACC+32*i; u=g+16
        for r in range(16): A(f"v_mul_f32 v{ST+r}, s48, v{g+r}")
        for r in range(16): A(f"v_exp_f32 v{ST+r}, v{ST+r}")
        for r in range(16): A(f"v_mul_f32 v{g+r}, v{g+r}, v{u+r}")
        for r in range(16): A(f"v_add_f32 v{ST+r}, 1.0, v{ST+r}")
        for r in range(16): A(f"v_rcp_f32 v{ST+r}, v{ST+r}")
        A("s_nop 0")
        for r in range(16): A(f"v_mul_f32 v{g+r}, v{g+r}, v{ST+r}")
        for r in range(8): A(f"v_cvt_pk_bf16_f32 v{g+r}, v{g+2*r}, v{g+2*r+1}")
        A(f"buffer_store_dwordx4 {v(g,4)}, v3, s[32:35], s46 offen")
        A(f"buffer_store_dwordx4 {v(g+4,4)}, v3, s[32:35], s46 offen offset:1024")
        A(f"s_add_u32 s46, s46, {86*1024}")
    frag_fin()
    if asmlib.PROF:
        A("s_waitcnt vmcnt(0)")
        A("s_add_u32 s42, s42, 4")
    stamp(A,1,5); stamp_out(A,1,6,42)
    A("s_endpgm")
    A(f"{name}_idle:")
    A("s_barrier")
    frag_issue()
    frag_fin()
    A("s_endpgm")
def gen_k2(name,mode,opts):
    A=Asm()
    A(f"""
    s_cmp_ge_u32 s2, 256
    s_cbranch_scc1 {name}_end
    s_load_dwordx2 s[20:21], s[0:1], 72
    v_and_b32 v1, 63, v0
    v_lshrrev_b32 v2, 6, v0
    s_and_b32 s40, s2, 7
    s_lshr_b32 s41, s2, 3
    v_readfirstlane_b32 s42, v2
    """)
    stamp(A,1,0)
    A("s_waitcnt lgkmcnt(0)")
    if mode=="both":
        A(f"""
        s_cmp_ge_u32 s42, 8
        s_cbranch_scc1 {name}_ffn
        """)
        attn(A,name,opts)
        A(f"{name}_ffn:")
        A("s_sub_u32 s42, s42, 8")
        ffn(A,name,opts,True)
    elif mode=="attn": attn(A,name,opts)
    else: ffn(A,name,opts,False)
    A(f"{name}_end:")
    A("s_endpgm")
    return head(name)+A.text(), kd(name,168), 131072+64
```

```python
from asmlib import *
import asmlib
from k2 import fbits, MF
import math
def gen_k3(name,opts):
    A=Asm()
    AS=0+16; AF=80; ST=144; NS=6
    A(f"""
    s_cmp_ge_u32 s2, 256
    s_cbranch_scc1 {name}_end
    s_load_dwordx2 s[4:5], s[0:1], 0
    s_load_dwordx2 s[6:7], s[0:1], 56
    s_load_dwordx2 s[20:21], s[0:1], 72
    v_and_b32 v1, 63, v0
    v_lshrrev_b32 v2, 6, v0
    s_and_b32 s40, s2, 7
    s_lshr_b32 s41, s2, 3
    v_readfirstlane_b32 s42, v2
    s_lshl_b32 s43, s40, 2
    s_lshr_b32 s44, s41, 3
    s_add_u32 s43, s43, s44
    s_and_b32 s44, s41, 7
    v_lshlrev_b32 v3, 4, v1
    s_waitcnt lgkmcnt(0)
    """)
    stamp(A,2,0)
    srd(A,24,20,0,WS_USED); srd(A,28,4,0,2*MB); srd(A,32,6,0,2*MB)
    A(f"""
    s_lshl_b32 s45, s43, 16
    s_lshl_b32 s46, s42, 13
    s_add_u32 s45, s45, s46
    s_add_u32 s45, s45, {OF}
    s_lshl_b32 s47, s44, 16
    s_add_u32 s47, s47, s46
    s_add_u32 s47, s47, {WOF}
    v_add_u32 v4, s45, v3
    v_add_u32 v5, 0x8000, v4
    v_add_u32 v6, s47, v3
    v_add_u32 v7, 0x8000, v6
    s_mul_i32 s46, s42, 22
    s_cmp_eq_u32 s42, 3
    s_cselect_b32 s46, 65, s46
    s_lshl_b32 s46, s46, 10
    s_mul_i32 s45, s43, {2*86*1024}
    s_add_u32 s45, s45, s46
    s_add_u32 s45, s45, {HF}
    s_mul_i32 s47, s44, {2*86*1024}
    s_add_u32 s47, s47, s46
    s_add_u32 s47, s47, {W2F}
    v_add_u32 v8, s45, v3
    v_add_u32 v9, {86*1024}, v8
    v_add_u32 v10, s47, v3
    v_add_u32 v11, {86*1024}, v10
    s_cmp_ge_u32 s42, 2
    s_cselect_b32 s49, 0x40000000, {20*1024}
    """)
    steps=[("o",k) for k in range(8)]+[("h",k) for k in range(22)]
    def loads(i):
        kind,k=steps[i]; b=ST+16*(i%NS)
        a0=4 if kind=="o" else 8
        if kind=="h" and k==21: so="s49"
        else:
            so="s48"
            if k%4==0: A(f"s_mov_b32 s48, {(k>>2)*4096}")
        o=(k&3)*1024
        A(f"buffer_load_dwordx4 {v(b,4)}, v{a0+2}, s[24:27], {so} offen offset:{o}")
        A(f"buffer_load_dwordx4 {v(b+8,4)}, v{a0}, s[24:27], {so} offen offset:{o}")
        A(f"buffer_load_dwordx4 {v(b+4,4)}, v{a0+3}, s[24:27], {so} offen offset:{o}")
        A(f"buffer_load_dwordx4 {v(b+12,4)}, v{a0+1}, s[24:27], {so} offen offset:{o}")
    A(f"""
    v_and_b32 v12, 31, v1
    v_lshlrev_b32 v12, 10, v12
    v_lshrrev_b32 v13, 5, v1
    v_lshl_add_u32 v12, v13, 4, v12
    s_lshl_b32 s50, s43, 16
    s_and_b32 s51, s42, 1
    s_lshl_b32 s51, s51, 15
    s_add_u32 s50, s50, s51
    s_lshl_b32 s51, s44, 7
    s_add_u32 s50, s50, s51
    s_lshr_b32 s51, s42, 1
    s_lshl_b32 s51, s51, 6
    s_add_u32 s50, s50, s51
    s_nop 0
    buffer_load_dwordx4 v[240:243], v12, s[28:31], s50 offen
    buffer_load_dwordx4 v[244:247], v12, s[28:31], s50 offen offset:32
    """)
    for i in range(NS): loads(i)
    for r in range(128): A(f"v_mov_b32 v{16+r}, 0")
    n=len(steps)
    for i in range(n):
        kind,k=steps[i]; b=ST+16*(i%NS); acc=AS if kind=="o" else AF
        A(f"s_waitcnt vmcnt({4*min(NS-1,n-1-i)})")
        if i in (0,8): stamp(A,2,{0:1,8:2}[i])
        for nb in range(2):
            for tb in range(2):
                a=acc+16*(2*nb+tb)
                A(f"{MF} {v(a,16)}, {v(b+4*nb,4)}, {v(b+8+4*tb,4)}, {v(a,16)}")
        if i+NS<n: loads(i+NS)
    stamp(A,2,3)
    A(f"""
    s_lshl_b32 s51, s42, 12
    v_add_u32 v13, s51, v3
    v_add_u32 v14, 0x10000, v13
    s_lshl_b32 s51, s42, 14
    v_add_u32 v4, s51, v3
    v_add_u32 v5, 0x10000, v4
    v_permlane32_swap_b32 v240, v242
    v_permlane32_swap_b32 v241, v243
    v_permlane32_swap_b32 v244, v246
    v_permlane32_swap_b32 v245, v247
    s_nop 3
    """)
    for ai,(acc,ad) in enumerate(((AS,13),(AF,14))):
        for blk in range(4):
            for j in range(4):
                A(f"ds_write_b128 v{ad}, {v(acc+16*blk+4*j,4)} offset:{blk*16384+j*1024}")
    A("s_waitcnt lgkmcnt(0)")
    A("s_barrier")
    stamp(A,2,4)
    for ai,(acc,ad) in enumerate(((AF,5),(AS,4))):
        for src in range(4):
            for j in range(4):
                A(f"ds_read_b128 {v(acc+16*src+4*j,4)}, v{ad} offset:{src*4096+j*1024}")
    A(f"s_mov_b32 s48, {fbits(-math.log2(math.e)):#x}")
    A("s_waitcnt lgkmcnt(15)")
    A("s_waitcnt lgkmcnt(15)")
    def red(acc):
        for r in range(16):
            A(f"v_add_f32 v{acc+r}, v{acc+r}, v{acc+16+r}")
            A(f"v_add_f32 v{acc+32+r}, v{acc+32+r}, v{acc+48+r}")
        for r in range(16): A(f"v_add_f32 v{acc+r}, v{acc+r}, v{acc+32+r}")
    A("s_waitcnt lgkmcnt(0)")
    red(AF)
    T=ST
    for r in range(16): A(f"v_mul_f32 v{T+r}, s48, v{AF+r}")
    for r in range(16): A(f"v_exp_f32 v{T+r}, v{T+r}")
    red(AS)
    for r in range(16): A(f"v_add_f32 v{T+r}, 1.0, v{T+r}")
    for r in range(16): A(f"v_rcp_f32 v{T+r}, v{T+r}")
    for r in range(16): A(f"v_mul_f32 v{AS+r}, v{AS+r}, v{AF+r}")
    for r in range(8):
        A(f"v_lshlrev_b32 v{T+16+2*r}, 16, v{240+r}")
        A(f"v_and_b32 v{T+17+2*r}, 0xffff0000, v{240+r}")
    for r in range(16): A(f"v_fma_f32 v{AS+r}, v{AS+r}, v{T+r}, v{T+16+r}")
    for r in range(8): A(f"v_cvt_pk_bf16_f32 v{AS+r}, v{AS+2*r}, v{AS+2*r+1}")
    A(f"""
    s_nop 1
    v_permlane32_swap_b32 v{AS}, v{AS+2}
    v_permlane32_swap_b32 v{AS+1}, v{AS+3}
    v_permlane32_swap_b32 v{AS+4}, v{AS+6}
    v_permlane32_swap_b32 v{AS+5}, v{AS+7}
    buffer_store_dwordx4 {v(AS,4)}, v12, s[32:35], s50 offen
    buffer_store_dwordx4 {v(AS+4,4)}, v12, s[32:35], s50 offen offset:32
    """)
    if asmlib.PROF: A("s_waitcnt vmcnt(0)")
    stamp(A,2,5); stamp_out(A,2,6,42)
    A(f"{name}_end:")
    A("s_endpgm")
    return head(name)+A.text(), kd(name,248), 131072
```

```python
import sys, importlib
from asmlib import *
import k1
P="recurrent_scan__mha_block__glu_gated_swiglu__prompt"
ref=open(f"cdna_kernels/{P}.s.ref").read().split("\n")
hdr=[l for l in ref if l.startswith(";") and "@launch" not in l and "Override" not in l and "grid=ceil" not in l]
import asmlib
asmlib.PROF="prof" in sys.argv[2:]
ks=[]
def add(name,res,grid,block):
    ks.append((name,res[0],res[1],res[2],grid,block))
add("k1_kernel",k1.gen_k1("k1_kernel",sys.argv[2:]),256,512)
opts=sys.argv[2:]
if "k1only" not in opts:
    import k2, k3
    merged = "sep" not in opts
    if merged:
        add("k2_kernel",k2.gen_k2("k2_kernel","both",opts),256,768)
    else:
        add("k2_kernel",k2.gen_k2("k2_kernel","attn",opts),256,256)
        add("k2f_kernel",k2.gen_k2("k2f_kernel","ffn",opts),256,256)
    if "nok3" not in opts and "fuse" not in opts: add("k3_kernel",k3.gen_k3("k3_kernel",opts),256,256)
import re
for fl in ("sc1","sc0sc1","nt"):
    if "st_"+fl in opts:
        f={"sc1":" sc1","sc0sc1":" sc0 sc1","nt":" nt"}[fl]
        ks=[(n,re.sub(r"(buffer_store_dwordx4 [^\n]*)",r"\1"+f,code) if n!="k3_kernel" else code,d,lds,g,b) for n,code,d,lds,g,b in ks]
out="\n".join(hdr)+"\n"
for n,code,d,lds,g,b in ks: out+=f"; @launch kernel={n} grid=({g},1,1) block=({b},1,1) lds={lds}\n"
out+='.amdgcn_target "amdgcn-amd-amdhsa--gfx950"\n'
for n,code,d,lds,g,b in ks: out+=code
for n,code,d,lds,g,b in ks: out+=d
open(sys.argv[1],"w").write(out)
open("launch.txt","w").write(" ".join(f"{n} {g} {b} {lds}" for n,code,d,lds,g,b in ks))
```

```python
from asmlib import *
import asmlib
import math, struct
def gen_k1(name,opts=()):
    A=Asm()
    XS=0; KS=1088; TBS=32*KS; WR=2*TBS; SLOT=24576; FR=WR+3*SLOT
    FI=int(([o[4:] for o in opts if o.startswith("k1fi")]+["1"])[0])
    LNI=int(([o[4:] for o in opts if o.startswith("k1li")]+["2"])[0])
    A(f"""
    s_cmp_ge_u32 s2, 256
    s_cbranch_scc1 {name}_end
    s_load_dwordx4 s[4:7], s[0:1], 0
    s_load_dwordx4 s[12:15], s[0:1], 32
    s_load_dwordx2 s[16:17], s[0:1], 48
    s_load_dwordx2 s[22:23], s[0:1], 16
    s_load_dwordx2 s[20:21], s[0:1], 72
    v_and_b32 v1, 63, v0
    v_lshrrev_b32 v2, 6, v0
    s_and_b32 s40, s2, 7
    s_lshr_b32 s41, s2, 3
    v_readfirstlane_b32 s42, v2
    s_lshr_b32 s43, s40, 1
    s_lshl_b32 s43, s43, 3
    s_lshr_b32 s73, s41, 2
    s_add_u32 s43, s43, s73
    s_and_b32 s44, s40, 1
    s_lshl_b32 s44, s44, 2
    s_and_b32 s45, s41, 3
    s_add_u32 s44, s44, s45
    v_lshrrev_b32 v3, 3, v1
    v_and_b32 v5, 7, v1
    v_lshlrev_b32 v4, 10, v3
    v_lshl_add_u32 v4, v5, 4, v4
    s_lshl_b32 s45, s43, 16
    s_lshl_b32 s46, s42, 13
    s_add_u32 s45, s45, s46
    """)
    if "k1nostag" in opts: A("s_mov_b32 s73, 0")
    stamp(A,0,0)
    A("s_waitcnt lgkmcnt(0)")
    srd(A,24,4,0,2048*1024)
    for i in range(8): A(f"buffer_load_dwordx4 {v(64+4*i,4)}, v4, s[24:27], s45 offen offset:{128*i}")
    srd(A,36,20,0,WS_USED)
    A(f"""
    s_lshr_b32 s46, s42, 2
    s_mul_i32 s46, s46, {TBS}
    s_and_b32 s47, s42, 3
    s_lshl_b32 s47, s47, 7
    s_add_u32 s46, s46, s47
    v_mul_u32_u24 v6, 544, v5
    v_lshl_add_u32 v6, v3, 4, v6
    v_add_u32 v6, s46, v6
    v_mov_b32 v36, 0xffff0000
    s_cmp_ge_u32 s42, 4
    s_cbranch_scc1 {name}_help
    """)
    def layernorm(nafter,dm=()):
        dm=list(dm); nd=0
        A("v_mov_b32 v48, 0\nv_mov_b32 v49, 0\nv_mov_b32 v50, 0\nv_mov_b32 v51, 0")
        for i in range(8):
            A(f"s_waitcnt vmcnt({nafter+7-i+nd})")
            if dm and i>=LNI:
                for q in range(2 if i<7 else len(dm)): A(dm.pop(0)); nd+=1
            for j in range(4):
                r=4*i+j
                A(f"""
                v_lshlrev_b32 v{128+2*r}, 16, v{64+r}
                v_and_b32 v{129+2*r}, v36, v{64+r}
                v_add_f32 v48, v48, v{128+2*r}
                v_add_f32 v49, v49, v{129+2*r}
                v_fmac_f32 v50, v{128+2*r}, v{128+2*r}
                v_fmac_f32 v51, v{129+2*r}, v{129+2*r}
                """)
        A("v_add_f32 v48, v48, v49\nv_add_f32 v50, v50, v51\ns_nop 1")
        for d in ("quad_perm:[1,0,3,2]","quad_perm:[2,3,0,1]","row_half_mirror"):
            A(f"v_add_f32_dpp v48, v48, v48 {d} row_mask:0xf bank_mask:0xf")
            A(f"v_add_f32_dpp v50, v50, v50 {d} row_mask:0xf bank_mask:0xf")
            A("s_nop 1")
        A("""
        v_mul_f32 v48, 0x3b000000, v48
        v_mul_f32 v50, 0x3b000000, v50
        v_fma_f32 v50, -v48, v48, v50
        v_max_f32 v50, 0, v50
        v_add_f32 v50, 0x3727c5ac, v50
        v_rsq_f32 v49, v50
        s_nop 0
        v_mul_f32 v50, v48, v49
        v_sub_f32 v50, 0, v50
        """)
        for i in range(8):
            for j in range(4):
                r=4*i+j
                A(f"v_fma_f32 v{128+2*r}, v{128+2*r}, v49, v50")
                A(f"v_fma_f32 v{129+2*r}, v{129+2*r}, v49, v50")
            for j in range(4):
                r=4*i+j
                A(f"v_cvt_pk_bf16_f32 v{64+r}, v{128+2*r}, v{129+2*r}")
            A(f"ds_write_b128 v6, {v(64+4*i,4)} offset:{4*KS*i}")
    A(f"""
    s_lshr_b32 s46, s42, 1
    s_mul_i32 s47, s46, {TBS}
    s_and_b32 s48, s42, 1
    v_and_b32 v11, 31, v1
    v_lshrrev_b32 v12, 5, v1
    v_mul_u32_u24 v24, 544, v12
    v_lshl_add_u32 v24, v11, 4, v24
    v_add_u32 v24, s47, v24
    v_bfe_u32 v13, v1, 2, 2
    v_lshl_add_u32 v14, v12, 3, v13
    v_mul_u32_u24 v14, 0x180, v14
    v_lshrrev_b32 v13, 1, v13
    v_xor_b32 v13, s48, v13
    v_lshl_add_u32 v14, v13, 6, v14
    v_bfe_u32 v13, v1, 4, 1
    v_lshl_add_u32 v14, v13, 5, v14
    v_and_b32 v13, 3, v1
    v_lshl_add_u32 v28, v13, 3, v14
    v_lshlrev_b32 v2, 4, v1
    """)
    layernorm(0)
    for r in range(96,144): A(f"v_mov_b32 v{r}, 0")
    XF=[40,44]; WF=[8,52]
    AQ,AK,AV=96,112,128
    def reads(st,buf):
        A(f"ds_read_b128 {v(XF[buf],4)}, v30 offset:{st*KS}")
        for bq in range(3):
            for p in range(2):
                A(f"ds_read_b64_tr_b16 {v(WF[buf]+4*bq+2*p,2)}, v34 offset:{st*6144+p*1536+bq*128}")
    def newchunk(c):
        A(f"s_add_u32 s74, s73, {c}")
        A(f"s_and_b32 s74, s74, 7")
        A(f"s_mul_i32 s74, s74, {4*KS}")
        A(f"v_add_u32 v34, {WR+(c%3)*SLOT}, v28")
        A(f"v_add_u32 v30, s74, v24")
        if c==0: A("s_waitcnt lgkmcnt(0)")
        if c==0: stamp(A,0,1)
        A("s_barrier")
        if c in (0,4): stamp(A,0,{0:2,4:3}[c])
        reads(0,0)
    newchunk(0)
    for c in range(8):
        for st in range(4):
            b=st&1
            if st<3:
                reads(st+1,b^1)
                A("s_waitcnt lgkmcnt(7)")
            else:
                A("s_waitcnt lgkmcnt(0)")
                if c<7: newchunk(c+1)
            x=XF[b]; w=WF[b]
            A(f"v_mfma_f32_32x32x16_bf16 {v(AQ,16)}, {v(w,4)}, {v(x,4)}, {v(AQ,16)}")
            A(f"v_mfma_f32_32x32x16_bf16 {v(AK,16)}, {v(w+4,4)}, {v(x,4)}, {v(AK,16)}")
            A(f"v_mfma_f32_32x32x16_bf16 {v(AV,16)}, {v(x,4)}, {v(w+8,4)}, {v(AV,16)}")
    stamp(A,0,4)
    qsb=struct.unpack("<I",struct.pack("<f",0.25*math.log2(math.e)))[0]
    A(f"""
    s_lshl_b32 s54, s43, 1
    s_add_u32 s54, s54, s46
    s_lshl_b32 s55, s44, 1
    s_add_u32 s55, s55, s48
    s_lshl_b32 s55, s55, 17
    s_lshl_b32 s56, s54, 10
    s_add_u32 s55, s55, s56
    s_add_u32 s56, s55, 0x10000
    s_add_u32 s57, s55, {KF}
    s_add_u32 s58, s56, {KF}
    s_mov_b32 s59, {qsb:#x}
    v_and_b32 v11, 0x33, v1
    v_bfe_u32 v13, v1, 2, 1
    v_lshl_or_b32 v11, v13, 3, v11
    v_bfe_u32 v13, v1, 3, 1
    v_lshl_or_b32 v11, v13, 2, v11
    v_lshlrev_b32 v11, 4, v11
    v_and_b32 v12, 15, v1
    v_lshrrev_b32 v13, 5, v1
    v_lshl_add_u32 v12, v13, 4, v12
    v_lshlrev_b32 v12, 4, v12
    v_bfe_u32 v13, v1, 4, 1
    v_lshl_add_u32 v12, v13, 16, v12
    """)
    for r in range(16): A(f"v_mul_f32 v{AQ+r}, s59, v{AQ+r}")
    for r in range(8): A(f"v_cvt_pk_bf16_f32 v{AQ+r}, v{AQ+2*r}, v{AQ+2*r+1}")
    A(f"buffer_store_dwordx4 {v(AQ,4)}, v2, s[36:39], s55 offen")
    A(f"buffer_store_dwordx4 {v(AQ+4,4)}, v2, s[36:39], s56 offen")
    for r in range(8): A(f"v_cvt_pk_bf16_f32 v{AK+r}, v{AK+2*r}, v{AK+2*r+1}")
    A(f"buffer_store_dwordx4 {v(AK,4)}, v11, s[36:39], s57 offen")
    A(f"buffer_store_dwordx4 {v(AK+4,4)}, v11, s[36:39], s58 offen")
    A(f"s_add_u32 s55, s55, {VF}")
    for r in range(8): A(f"v_cvt_pk_bf16_f32 v{AV+r}, v{AV+2*r}, v{AV+2*r+1}")
    A(f"buffer_store_dwordx4 {v(AV,4)}, v12, s[36:39], s55 offen")
    A(f"buffer_store_dwordx4 {v(AV+4,4)}, v12, s[36:39], s55 offen offset:512")
    if asmlib.PROF: A("s_waitcnt vmcnt(0)")
    stamp(A,0,5); stamp_out(A,0,6,42)
    A("s_endpgm")
    A(f"{name}_help:")
    A("s_sub_u32 s42, s42, 4")
    srd(A,28,6,0,512*3072)
    A(f"""
    s_mov_b32 s46, 0xAAAB
    s_mul_i32 s45, s42, 49152
    s_lshl_b32 s48, s44, 7
    s_mul_i32 s50, s42, 6144
    s_add_u32 s50, s50, {WR}
    """)
    def wcalc():
        for j in range(3):
            A(f"""
            v_add_u32 v16, {64*j}, v1
            v_mul_lo_u32 v17, v16, s46
            v_lshrrev_b32 v17, 20, v17
            v_mul_u32_u24 v18, 24, v17
            v_sub_u32 v18, v16, v18
            v_lshrrev_b32 v19, 2, v18
            v_bfe_u32 v16, v17, 1, 1
            v_xor_b32 v19, v19, v16
            v_mul_u32_u24 v17, 0xc00, v17
            v_lshrrev_b32 v16, 1, v19
            v_lshl_add_u32 v17, v16, 10, v17
            v_and_b32 v19, 1, v19
            v_lshl_add_u32 v17, v19, 6, v17
            v_and_b32 v18, 3, v18
            v_lshl_add_u32 v17, v18, 4, v17
            v_add_u32 v{20+j}, s45, v17
            v_add_u32 v{23+j}, 0x6000, v{20+j}
            """)
    def dma_list(c):
        sl=(c%3)*SLOT; L=[]
        for j in range(6):
            t=""
            if j==0: t=f"s_add_u32 s74, s73, {c}\ns_and_b32 s74, s74, 7\ns_mul_i32 s74, s74, 196608\ns_add_u32 s51, s48, s74\n"
            L.append(t+f"s_add_u32 m0, s50, {sl+j*1024}\ns_nop 0\nbuffer_load_dwordx4 v{20+j}, s[28:31], s51 offen lds")
        return L
    def issue_chunk(c):
        for t in dma_list(c): A(t)
    def frag_calc():
        A("""
        s_lshl_b32 s52, s2, 2
        s_add_u32 s52, s52, s42
        v_lshrrev_b32 v14, 2, v1
        v_and_b32 v15, 3, v1
        v_lshlrev_b32 v15, 4, v15
        v_mul_u32_u24 v14, 2752, v14
        v_add_u32 v26, v14, v15
        s_mul_i32 s53, s42, 3072
        """)
        A(f"s_add_u32 s53, s53, {FR}")
        srd(A,32,12,0,512*2752); srd(A,8,14,0,512*2752)
        for j in range(3):
            A(f"""
            s_add_u32 s54, s52, {1024*j}
            s_min_u32 s54, s54, 2751
            s_cmp_ge_u32 s54, 1376
            s_cselect_b32 s55, 1, 0
            s_mul_i32 s56, s55, 1376
            s_sub_u32 s56, s54, s56
            s_mul_i32 s57, s56, 6097
            s_lshr_b32 s57, s57, 18
            s_mul_i32 s58, s57, 43
            s_sub_u32 s58, s56, s58
            s_mul_i32 s56, s57, {16*2752}
            s_lshl_b32 s70, s58, 6
            s_add_u32 s{64+j}, s56, s70
            s_lshl_b32 s70, s58, 16
            s_lshl_b32 s57, s57, 11
            s_add_u32 s70, s70, s57
            s_mov_b32 s{67+j}, s55
            s_lshl_b32 s55, s55, 10
            s_add_u32 s70, s70, s55
            s_add_u32 s{60+j}, s70, {W13F}
            """)
    def frag_issue():
        for j in range(3):
            l=A.label("fm")
            A(f"""
            s_add_u32 m0, s53, {j*1024}
            s_cmp_eq_u32 s{67+j}, 0
            s_cbranch_scc1 {l}
            buffer_load_dwordx4 v26, s[8:11], s{64+j} offen lds
            s_branch {l}x
            {l}:
            buffer_load_dwordx4 v26, s[32:35], s{64+j} offen lds
            {l}x:
            """)
    def frag_fin():
        A("""
        v_bfe_u32 v13, v1, 2, 2
        v_bfe_u32 v14, v1, 4, 1
        v_lshlrev_b32 v13, 6, v13
        v_lshl_add_u32 v13, v14, 5, v13
        v_and_b32 v14, 3, v1
        v_lshl_add_u32 v13, v14, 3, v13
        v_lshrrev_b32 v14, 5, v1
        v_lshl_add_u32 v13, v14, 9, v13
        v_add_u32 v13, s53, v13
        """)
        for j in range(3):
            for p in range(2): A(f"ds_read_b64_tr_b16 {v(112+4*j+2*p,2)}, v13 offset:{j*1024+p*256}")
        for j in range(3):
            A(f"s_waitcnt lgkmcnt({4-2*j})")
            A(f"buffer_store_dwordx4 {v(112+4*j,4)}, v2, s[36:39], s{60+j} offen")
    FD=128; FUSE="fuse" in opts; F2E="f2e" in opts
    def f2_issue():
        A("s_waitcnt lgkmcnt(0)")
        A("""
        s_lshl_b32 s52, s2, 2
        s_add_u32 s52, s52, s42
        v_lshrrev_b32 v4, 5, v1
        v_and_b32 v5, 31, v1
        v_lshlrev_b32 v5, 1, v5
        v_lshl_add_u32 v4, v4, 12, v5
        v_add_u32 v5, 0x2000, v4
        s_mov_b32 s79, 0x20000
        """)
        for j in range(2):
            A(f"""
            s_add_u32 s55, s52, {1024*j}
            s_min_u32 s55, s55, 1887
            s_mov_b32 s78, {1376*1024}
            s_mov_b32 s71, {86*1024}
            s_mov_b32 s72, {W2F}
            s_cmp_ge_u32 s55, 1376
            s_cselect_b32 s76, s22, s16
            s_cselect_b32 s77, s23, s17
            s_cselect_b32 s78, {512*1024}, s78
            s_cselect_b32 s56, 1376, 0
            s_cselect_b32 s71, {32*1024}, s71
            s_cselect_b32 s72, {WOF}, s72
            s_sub_u32 s55, s55, s56
            s_lshr_b32 s57, s55, 4
            s_and_b32 s58, s55, 15
            s_lshl_b32 s56, s57, 14
            s_lshl_b32 s70, s58, 6
            s_add_u32 s56, s56, s70
            s_mul_i32 s70, s58, s71
            s_lshl_b32 s57, s57, 10
            s_add_u32 s70, s70, s57
            s_add_u32 s{74+j}, s70, s72
            """)
            for e in range(8):
                A(f"buffer_load_ushort v{FD+8*j+e}, v{4+(e>>2)}, s[76:79], s56 offen offset:{(e&3)*1024}")
    def f2_fin(n=0):
        A(f"s_waitcnt vmcnt({n})")
        for j in range(2):
            for e in range(4): A(f"v_lshl_or_b32 v{FD+8*j+e}, v{FD+8*j+2*e+1}, 16, v{FD+8*j+2*e}")
            A(f"buffer_store_dwordx4 {v(FD+8*j,4)}, v2, s[36:39], s{74+j} offen")
    FE="k1fe" in opts
    wcalc()
    if FE: frag_calc(); frag_issue()
    stamp(A,0,1)
    dm=dma_list(0)+dma_list(1)
    layernorm(3 if FE else 0,dm)
    A("s_waitcnt vmcnt(6) lgkmcnt(0)")
    stamp(A,0,2)
    A("s_barrier")
    issue_chunk(2)
    A(f"""
    s_lshr_b32 s46, s42, 1
    s_and_b32 s47, s42, 1
    s_lshl_b32 s47, s47, 1
    s_lshl_b32 s75, s44, 2
    s_add_u32 s47, s47, s75
    s_mul_i32 s75, s46, {TBS}
    s_mul_i32 s76, s47, {KS}
    s_add_u32 s75, s75, s76
    v_and_b32 v16, 31, v1
    v_lshrrev_b32 v17, 5, v1
    v_mul_u32_u24 v17, 544, v17
    v_lshl_add_u32 v17, v16, 4, v17
    v_add_u32 v17, s75, v17
    ds_read_b128 v[64:67], v17
    ds_read_b128 v[68:71], v17 offset:{KS}
    s_lshl_b32 s75, s43, 1
    s_add_u32 s75, s75, s46
    s_lshl_b32 s75, s75, 15
    s_lshl_b32 s47, s47, 10
    s_add_u32 s75, s75, s47
    s_add_u32 s49, s75, {XN}
    """)
    for c in range(1,8):
        A(f"s_waitcnt vmcnt({(6 if c<7 else 0)+(3 if c>5 and not FE else 0)+(16 if c>5 and FUSE and F2E else 0)})")
        A("s_barrier")
        if c+2<8: issue_chunk(c+2)
        if c==1 and not FE: frag_calc()
        if c==5 and not FE: frag_issue()
        if c==(5 if F2E else 7) and FUSE: f2_issue()
    A("""
    v_lshlrev_b32 v2, 4, v1
    s_waitcnt vmcnt(0) lgkmcnt(0)
    buffer_store_dwordx4 v[64:67], v2, s[36:39], s49 offen
    buffer_store_dwordx4 v[68:71], v2, s[36:39], s49 offen offset:1024
    s_lshl_b32 s49, s2, 5
    s_add_u32 s49, s49, 0x1800000
    v_lshlrev_b32 v16, 2, v1
    v_mov_b32 v17, 0
    s_mov_b64 exec, 0xff
    buffer_store_dword v17, v16, s[36:39], s49 offen
    s_mov_b64 exec, -1
    """)
    stamp(A,0,3)
    frag_fin()
    if FUSE: f2_fin()
    stamp(A,0,4)
    if asmlib.PROF:
        A("s_waitcnt vmcnt(0)")
        A("s_add_u32 s42, s42, 4")
    stamp(A,0,5); stamp_out(A,0,6,42)
    A(f"{name}_end:")
    A("s_endpgm")
    return head(name)+A.text(), kd(name,200), FR+12288
```

```python
from asmlib import *
import asmlib
import struct, math
def fbits(x): return struct.unpack("<I",struct.pack("<f",x))[0]
SHIFT=80.0
MF="v_mfma_f32_32x32x16_bf16"; SM="v_smfmac_f32_32x32x32_bf16"
def attn(A,name,opts):
    Q=8; KB=[12,16]; VB=[20,28]; NM=36; O=52; S=[68,84,100,116]; T=133
    PB=[int(q) for q in ([o[2:] for o in opts if o.startswith("pb")]+["11,14,15"])[0].split(",")]
    CB=int(([o[2:] for o in opts if o.startswith("cb")]+["5"])[0])
    srd(A,24,20,0,WS_USED)
    A(f"""
    s_lshl_b32 s43, s40, 2
    s_lshr_b32 s44, s41, 3
    s_add_u32 s43, s43, s44
    s_and_b32 s44, s41, 7
    s_lshl_b32 s44, s44, 3
    s_add_u32 s44, s44, s42
    v_lshlrev_b32 v4, 4, v1
    s_lshl_b32 s46, s43, 16
    s_lshl_b32 s47, s44, 10
    s_add_u32 s47, s47, s46
    s_add_u32 s48, s46, {KF}
    buffer_load_dwordx4 v[8:11], v4, s[24:27], s47 offen
    s_add_u32 s49, s46, {VF}
    """)
    def dma(base,n):
        A(f"s_mul_i32 s50, s42, {n*1024}")
        for reg,lds in ((48,0),(49,65536)):
            A(f"s_add_u32 s51, s50, {base}")
            A(f"s_add_u32 m0, s51, {lds}")
            A(f"s_add_u32 s51, s51, s{reg}")
            for j in range(n):
                A(f"buffer_load_dwordx4 v4, s[24:27], s51 offen offset:{j*1024} lds")
    dma(0,2); dma(16384,2)
    A(f"""
    v_mov_b32 v3, 0xdddd
    v_and_b32 v5, 15, v1
    v_lshrrev_b32 v6, 5, v1
    v_lshl_add_u32 v5, v6, 4, v5
    v_lshlrev_b32 v5, 4, v5
    v_add_u32 v5, 0x10000, v5
    s_mov_b32 s52, 0x0000ffff
    s_mov_b32 s53, 0x0000ffff
    s_mov_b32 s54, 0
    s_mov_b32 s57, 7
    s_mov_b32 s61, {sum(1<<q for q in PB) if PB else 0}
    s_setprio 2
    s_mov_b32 s58, {(1<<1)|(1<<CB)}
    s_mov_b32 s59, {(1<<3)|(1<<7)}
    v_mov_b32 v{T+2}, 0x20000
    v_mov_b32 v{T+3}, 0
    v_mov_b32 v{T+4}, 0
    ds_write_b64 v{T+2}, v[{T+3}:{T+4}]
    ds_write_b64 v{T+2}, v[{T+3}:{T+4}] offset:8
    """)
    for r in range(20,36): A(f"v_mov_b32 v{r}, 0x3f803f80")
    A("s_waitcnt vmcnt(4) lgkmcnt(0)")
    A(f"v_mov_b32 v{T+3}, 1")
    A("s_barrier")
    stamp(A,1,1)
    A(f"ds_read_b128 {v(KB[0],4)}, v4")
    A("s_waitcnt lgkmcnt(0)")
    A(f"{MF} {v(S[0],16)}, {v(KB[0],4)}, {v(Q,4)}, 0")
    A("s_nop 11")
    def maxtree(src,dst,first):
        for i in range(8):
            if i==0 and first: A(f"v_max_f32 v{dst}, v{src}, v{src+1}")
            else: A(f"v_max3_f32 v{dst}, v{src+2*i}, v{src+2*i+1}, v{dst}")
    def finish_max(shift):
        A(f"""
        v_mov_b32 v{T}, v6
        s_nop 1
        v_permlane32_swap_b32 v6, v{T}
        s_nop 1
        v_max_f32 v6, v6, v{T}
        """)
        A(f"v_sub_f32 v6, {fbits(-shift):#x}, v6" if shift else "v_sub_f32 v6, 0, v6")
    maxtree(S[0],6,True)
    finish_max(SHIFT)
    A(f"{name}_restart:")
    A(f"ds_read_b128 {v(KB[0],4)}, v4")
    A(f"ds_read_b128 {v(KB[1],4)}, v4 offset:1024")
    for r in range(16): A(f"v_mov_b32 v{NM+r}, v6")
    for r in range(16): A(f"v_mov_b32 v{O+r}, 0")
    for r in range(16): A(f"v_mov_b32 v{S[3]+r}, 0")
    A(f"""
    v_mov_b32 v6, v4
    v_mov_b32 v7, v5
    s_mov_b32 s55, 0
    s_waitcnt lgkmcnt(0)
    {MF} {v(S[0],16)}, {v(KB[0],4)}, {v(Q,4)}, {v(NM,16)}
    s_nop 7
    """)
    UN=4
    A(".p2align 6")
    A(f"{name}_loop:")
    lb=A.label("nob")
    A(f"""
    s_cmp_gt_u32 s55, s57
    s_cbranch_scc1 {lb}
    s_bitcmp1_b32 s58, s55
    s_cbranch_scc0 {lb}c
    s_waitcnt vmcnt(0)
    s_mov_b64 exec, 1
    ds_add_u32 v{T+2}, v{T+3}
    s_mov_b64 exec, -1
    s_cmp_eq_u32 s55, 1
    s_cbranch_scc0 {lb}
    {"s_memrealtime s[84:85]" if asmlib.PROF else ""}
    """)
    dma(32768,4)
    A(f"""
    s_branch {lb}
    {lb}c:
    s_bitcmp1_b32 s59, s55
    s_cbranch_scc0 {lb}
    s_lshl_b32 s56, s55, 1
    s_add_u32 s56, s56, 2
    {lb}s:
    ds_read_b32 v{T+1}, v{T+2}
    s_waitcnt lgkmcnt(0)
    v_readfirstlane_b32 s60, v{T+1}
    s_cmp_ge_u32 s60, s56
    s_cbranch_scc0 {lb}s
    {"s_memrealtime s[86:87]" if asmlib.PROF else ""}
    {lb}:
    """)
    for t in range(UN):
        cur=S[t%4]; nxt=S[(t+1)%4]; prv=S[(t-1)%4]; vp=VB[(t-1)%2]
        ex=[f"v_exp_f32 v{cur+i}, v{cur+i}" for i in range(16)]
        A("s_waitcnt lgkmcnt(0)")
        A(f"{MF} {v(nxt,16)}, {v(KB[(t+1)%2],4)}, {v(Q,4)}, {v(NM,16)}")
        A(f"ds_read_b128 {v(KB[t%2],4)}, v6 offset:{(t+2)*1024}")
        A("s_mov_b64 exec, s[52:53]")
        A(f"ds_read_b128 {v(VB[t%2],4)}, v7 offset:{t*1024}")
        A(f"ds_read_b128 {v(VB[t%2]+4,4)}, v7 offset:{t*1024+512}")
        A("s_mov_b64 exec, -1")
        for e in ex[0:5]: A(e)
        A(f"{SM} {v(O,16)}, {v(vp,4)}, {v(prv,8)}, v3")
        for e in ex[5:10]: A(e)
        A(f"{SM} {v(O,16)}, {v(vp+4,4)}, {v(prv+8,8)}, v3")
        for e in ex[10:16]: A(e)
    A(f"""
    v_add_u32 v6, {UN*1024}, v6
    v_add_u32 v7, {UN*1024}, v7
    s_add_u32 s55, s55, 1
    s_bitcmp1_b32 s61, s55
    s_cbranch_scc0 {lb}p
    s_setprio 2
    s_cmp_eq_u32 s55, {PB[0]}
    s_cbranch_scc1 {lb}p
    s_setprio 1
    s_cmp_eq_u32 s55, {PB[1]}
    s_cbranch_scc1 {lb}p
    s_setprio 0
    {lb}p:
    s_cmp_lt_u32 s55, {64//UN}
    s_cbranch_scc1 {name}_loop
    s_waitcnt lgkmcnt(0)
    """)
    vp=VB[(UN-1)%2]
    A(f"{SM} {v(O,16)}, {v(vp,4)}, {v(S[3],8)}, v3")
    A(f"{SM} {v(O,16)}, {v(vp+4,4)}, {v(S[3]+8,8)}, v3")
    A("s_nop 11")
    stamp(A,1,4)
    A(f"s_cmp_eq_u32 s54, 0")
    A(f"s_cbranch_scc0 {name}_fin")
    A(f"v_add_f32 v6, |v{O}|, v{O+8}")
    for r in range(1,8): A(f"v_add_f32 v6, |v{O+r}|, v6")
    A(f"""
    v_mov_b32 v7, 0x207
    v_cmp_class_f32 vcc, v6, v7
    s_nop 1
    s_cmp_eq_u64 vcc, 0
    s_cbranch_scc1 {name}_fin
    """) if "forcefb" not in opts else None
    A(f"""
    s_mov_b32 s54, 1
    s_mov_b32 s58, 0
    s_mov_b32 s59, 0
    s_mov_b32 s55, 0
    v_mov_b32 v{T+1}, v4
    v_mov_b32 v6, 0xff800000
    {name}_mx:
    ds_read_b128 {v(KB[0],4)}, v{T+1}
    s_waitcnt lgkmcnt(0)
    {MF} {v(S[0],16)}, {v(KB[0],4)}, {v(Q,4)}, 0
    s_nop 11
    """)
    maxtree(S[0],6,False)
    A(f"""
    v_add_u32 v{T+1}, 1024, v{T+1}
    s_add_u32 s55, s55, 1
    s_cmp_lt_u32 s55, 64
    s_cbranch_scc1 {name}_mx
    """)
    finish_max(0)
    A(f"s_branch {name}_restart")
    A(f"{name}_fin:")
    A(f"v_rcp_f32 v6, v{O+8}")
    A(f"""
    s_lshl_b32 s46, s44, 15
    s_lshl_b32 s47, s43, 10
    s_add_u32 s46, s46, s47
    s_add_u32 s46, s46, {OF}
    """)
    for r in range(8): A(f"v_mul_f32 v{O+r}, v{O+r}, v6")
    for r in range(4): A(f"v_cvt_pk_bf16_f32 v{O+r}, v{O+2*r}, v{O+2*r+1}")
    if "fuse" not in opts: A(f"buffer_store_dwordx4 {v(O,4)}, v4, s[24:27], s46 offen")
    else: A(f"""
    buffer_store_dwordx4 {v(O,4)}, v4, s[24:27], s46 offen{" sc1" if "osc1" in opts else " sc0 sc1"}
    s_and_b32 s46, s41, 7
    s_lshl_b32 s46, s46, 5
    s_add_u32 s46, s46, s43
    s_lshl_b32 s46, s46, 2
    s_add_u32 s46, s46, {FLG+6144}
    v_mov_b32 v7, 0
    s_mov_b64 exec, 1
    s_waitcnt vmcnt(0)
    ds_add_rtn_u32 v6, v{T+2}, v{T+3} offset:8
    s_waitcnt lgkmcnt(0)
    v_readfirstlane_b32 s47, v6
    s_cmp_eq_u32 s47, 7
    s_cbranch_scc0 {name}_ax
    buffer_store_dword v{T+3}, v7, s[24:27], s46 offen sc0 sc1
    {name}_ax:
    s_mov_b64 exec, -1
    """)
    if asmlib.PROF: A("s_waitcnt vmcnt(0)")
    stamp(A,1,5)
    if asmlib.PROF:
        A(f"s_bitcmp1_b32 s42, 1\ns_cbranch_scc1 {name}_end\ns_lshr_b32 s79, s42, 1\ns_and_b32 s42, s42, 1\ns_or_b32 s42, s42, s79")
    stamp_out(A,1,6,42)
    A("s_endpgm")
def ffn(A,name,opts,bars):
    WT={"wsc1":" sc1","wsc01":" sc0 sc1","wnt":" nt","wnts":" nt sc1"}.get(([o for o in opts if o in ("wsc1","wsc01","wnt","wnts","wnone")]+["wsc01"])[0],"")
    ACC=8; XS=104; ST=104; FE="fe" in opts; FD=88 if FE else 144
    A(f"""
    s_load_dwordx2 s[16:17], s[0:1], 48
    s_load_dwordx2 s[8:9], s[0:1], 16
    s_lshl_b32 s43, s41, 2
    s_add_u32 s43, s43, s42
    s_mul_i32 s44, s43, 5958
    s_lshr_b32 s44, s44, 16
    s_mul_i32 s45, s44, 11
    s_sub_u32 s45, s43, s45
    s_lshr_b32 s46, s40, 1
    s_mul_i32 s46, s46, 11
    s_add_u32 s45, s45, s46
    v_lshlrev_b32 v3, 4, v1
    s_cmp_ge_u32 s44, 11
    s_cbranch_scc1 {name}_idle
    s_cmp_ge_u32 s45, 43
    s_cbranch_scc1 {name}_idle
    s_and_b32 s46, s40, 1
    s_mul_i32 s46, s46, 11
    s_add_u32 s44, s44, s46
    s_lshl_b32 s62, s44, 6
    s_add_u32 s62, s62, s45
    s_lshl_b32 s62, s62, 2
    s_add_u32 s62, s62, {FLG}
    s_mul_i32 s44, s44, 3
    s_lshl_b32 s58, s44, 15
    s_lshl_b32 s46, s45, 16
    v_add_u32 v7, s46, v3
    v_add_u32 v4, s58, v3
    v_add_u32 v5, 0x8000, v4
    v_add_u32 v6, 0x10000, v4
    s_mov_b32 s47, 0
    s_mov_b32 s48, 0
    """)
    srd(A,24,20,XN,2*MB); srd(A,32,20,HF,HF_SZ); srd(A,28,20,W13F,W13F_SZ)
    if "fuse" in opts:
        def frag_issue(): pass
        def frag_fin(n=0): srd(A,64,20,0,WS_USED)
    else:
        def frag_issue():
            A("s_waitcnt lgkmcnt(0)")
            A("""
            s_lshl_b32 s52, s2, 2
            s_add_u32 s52, s52, s42
            v_lshrrev_b32 v4, 5, v1
            v_and_b32 v5, 31, v1
            v_lshlrev_b32 v5, 1, v5
            v_lshl_add_u32 v4, v4, 12, v5
            v_add_u32 v5, 0x2000, v4
            s_mov_b32 s67, 0x20000
            """)
            for j in range(2):
                A(f"""
                s_add_u32 s55, s52, {1024*j}
                s_min_u32 s55, s55, 1887
                s_mov_b32 s66, {1376*1024}
                s_mov_b32 s71, {86*1024}
                s_mov_b32 s72, {W2F}
                s_cmp_ge_u32 s55, 1376
                s_cselect_b32 s64, s8, s16
                s_cselect_b32 s65, s9, s17
                s_cselect_b32 s66, {512*1024}, s66
                s_cselect_b32 s56, 1376, 0
                s_cselect_b32 s71, {32*1024}, s71
                s_cselect_b32 s72, {WOF}, s72
                s_sub_u32 s55, s55, s56
                s_lshr_b32 s68, s55, 4
                s_and_b32 s69, s55, 15
                s_lshl_b32 s56, s68, 14
                s_lshl_b32 s70, s69, 6
                s_add_u32 s56, s56, s70
                s_mul_i32 s70, s69, s71
                s_lshl_b32 s68, s68, 10
                s_add_u32 s70, s70, s68
                s_add_u32 s{60+j}, s70, s72
                """)
                for e in range(8):
                    A(f"buffer_load_ushort v{FD+8*j+e}, v{4+(e>>2)}, s[64:67], s56 offen offset:{(e&3)*1024}")
        def frag_fin(n=0):
            srd(A,64,20,0,WS_USED)
            A(f"s_waitcnt vmcnt({n})")
            for j in range(2):
                for e in range(4): A(f"v_lshl_or_b32 v{FD+8*j+e}, v{FD+8*j+2*e+1}, 16, v{FD+8*j+2*e}")
                A(f"buffer_store_dwordx4 {v(FD+8*j,4)}, v3, s[64:67], s{60+j} offen{WT}")
    NS=3
    def loads(k):
        b=XS+20*(k%NS)
        A(f"""
        buffer_load_dwordx4 {v(b,4)}, v7, s[28:31], s48 offen
        buffer_load_dwordx4 {v(b+8,4)}, v4, s[24:27], s47 offen
        buffer_load_dwordx4 {v(b+4,4)}, v7, s[28:31], s48 offen offset:1024
        s_add_u32 s48, s48, 2048
        buffer_load_dwordx4 {v(b+12,4)}, v5, s[24:27], s47 offen
        buffer_load_dwordx4 {v(b+16,4)}, v6, s[24:27], s47 offen
        s_add_u32 s47, s47, 1024
        """)
    def mm(k):
        b=XS+20*(k%NS)
        for i in range(3):
            for m in range(2):
                a=ACC+16*(2*i+m)
                A(f"{MF} {v(a,16)}, {v(b+4*m,4)}, {v(b+8+4*i,4)}, {v(a,16)}")
    SP=int(([o[3:] for o in opts if o.startswith("fsp")]+["7"])[0])
    def step(k):
        if SP==0:
            mm(k); loads(k+NS); return
        b=XS+20*(k%NS)
        after={1:[f"buffer_load_dwordx4 {v(b+8,4)}, v4, s[24:27], s47 offen"],3:[f"buffer_load_dwordx4 {v(b+12,4)}, v5, s[24:27], s47 offen"],
               4:[f"buffer_load_dwordx4 {v(b,4)}, v7, s[28:31], s48 offen"],
               5:[f"buffer_load_dwordx4 {v(b+4,4)}, v7, s[28:31], s48 offen offset:1024",f"buffer_load_dwordx4 {v(b+16,4)}, v6, s[24:27], s47 offen","s_add_u32 s48, s48, 2048","s_add_u32 s47, s47, 1024"]}
        for q in range(6):
            i,m=q>>1,q&1; a=ACC+16*q
            A(f"{MF} {v(a,16)}, {v(b+4*m,4)}, {v(b+8+4*i,4)}, {v(a,16)}")
            for t in after.get(q,[]): A(t)
            if q<5 and SP>1: A(f"s_nop {SP}")
    for r in range(96): A(f"v_mov_b32 v{ACC+r}, 0")
    if "noprio" not in opts: A("s_setprio 3")
    if "ffnearly" not in opts: A("s_barrier")
    if FE:
        A("v_mov_b32 v2, v4\nv_mov_b32 v0, v5")
        frag_issue()
        A("v_mov_b32 v4, v2\nv_mov_b32 v5, v0")
    for k in range(NS): loads(k)
    if FE:
        frag_fin(5*NS)
        A("s_nop 1")
        for r in range(16): A(f"v_mov_b32 v{FD+r}, 0")
    A(f"""
    s_mov_b32 s55, 0
    {name}_floop:
    """)
    for k in range(NS):
        A(f"s_waitcnt vmcnt({5*(NS-1)})")
        if asmlib.PROF and k==0: A(f"s_cmp_eq_u32 s55, 0\ns_cbranch_scc0 {name}_ps\ns_memrealtime s[82:83]\n{name}_ps:")
        step(k)
    A(f"""
    s_add_u32 s55, s55, 1
    s_cmp_lt_u32 s55, 9
    s_cbranch_scc1 {name}_floop
    """)
    stamp(A,1,2)
    for k in range(27,32):
        A(f"s_waitcnt vmcnt({5*min(NS-1,31-k)})")
        mm(k)
        if k+NS<32: loads(k+NS)
    if "noeprio" not in opts: A("s_setprio 3")
    stamp(A,1,3)
    if not FE: frag_issue()
    A(f"""
    s_mul_i32 s46, s44, {86*1024}
    s_lshl_b32 s47, s45, 11
    s_add_u32 s46, s46, s47
    s_mov_b32 s48, {fbits(-math.log2(math.e)):#x}
    s_nop 7
    """)
    stamp(A,1,4)
    for i in range(3):
        g=ACC+32*i; u=g+16
        for r in range(16): A(f"v_mul_f32 v{ST+r}, s48, v{g+r}")
        for r in range(16): A(f"v_exp_f32 v{ST+r}, v{ST+r}")
        for r in range(16): A(f"v_mul_f32 v{g+r}, v{g+r}, v{u+r}")
        for r in range(16): A(f"v_add_f32 v{ST+r}, 1.0, v{ST+r}")
        for r in range(16): A(f"v_rcp_f32 v{ST+r}, v{ST+r}")
        A("s_nop 0")
        for r in range(16): A(f"v_mul_f32 v{g+r}, v{g+r}, v{ST+r}")
        for r in range(8): A(f"v_cvt_pk_bf16_f32 v{g+r}, v{g+2*r}, v{g+2*r+1}")
        A(f"buffer_store_dwordx4 {v(g,4)}, v3, s[32:35], s46 offen{WT}")
        A(f"buffer_store_dwordx4 {v(g+4,4)}, v3, s[32:35], s46 offen offset:1024{WT}")
        A(f"s_add_u32 s46, s46, {86*1024}")
    if "fuse" not in opts:
        if not FE: frag_fin()
        if asmlib.PROF:
            A("s_waitcnt vmcnt(0)")
            A("s_add_u32 s42, s42, 4")
        stamp(A,1,5); stamp_out(A,1,6,42)
        A("s_endpgm")
        A(f"{name}_idle:")
        A("s_barrier")
        frag_issue()
        frag_fin()
        A("s_endpgm")
        return
    frag_fin()
    A("""
    v_mov_b32 v73, 1
    v_mov_b32 v74, 0
    s_mov_b64 exec, 1
    s_waitcnt vmcnt(0)
    buffer_store_dword v73, v74, s[64:67], s62 offen sc0 sc1
    s_mov_b64 exec, -1
    """)
    A(f"s_branch {name}_join")
    A(f"{name}_idle:")
    A("s_barrier")
    frag_issue()
    frag_fin()
    A(f"{name}_join:")
    phase2(A,name,opts)
def poll(A,name,tag,nl,off):
    A(f"""
    s_mov_b32 s55, 0
    {name}_{tag}:
    buffer_load_dword v76, v75, s[64:67], {off} offen sc0 sc1
    """)
    if nl==64: A("buffer_load_dword v77, v75, s[64:67], s57 offen sc0 sc1")
    A("s_add_u32 s55, s55, 1\ns_waitcnt vmcnt(0)")
    if nl==64: A("v_and_b32 v76, v76, v77")
    A(f"""
    v_cmp_eq_u32 vcc, 0, v76
    s_cmp_ge_u32 s55, 0x8000
    s_cbranch_scc1 {name}_{tag}x
    s_cmp_eq_u64 vcc, 0
    s_cbranch_scc0 {name}_{tag}
    {name}_{tag}x:
    """)
def phase2(A,name,opts):
    AF=8; ST=72; NS=6; X=152
    A(f"""
    s_load_dwordx2 s[4:5], s[0:1], 0
    s_load_dwordx2 s[6:7], s[0:1], 56
    v_mov_b32 v72, 0x20000
    v_mov_b32 v73, 1
    s_lshl_b32 s43, s40, 2
    s_lshr_b32 s44, s41, 3
    s_add_u32 s43, s43, s44
    s_and_b32 s44, s41, 7
    s_mul_i32 s46, s42, 22
    s_cmp_eq_u32 s42, 3
    s_cselect_b32 s46, 65, s46
    s_lshl_b32 s46, s46, 10
    s_mul_i32 s45, s43, {2*86*1024}
    s_add_u32 s45, s45, s46
    s_add_u32 s45, s45, {HF}
    s_mul_i32 s47, s44, {2*86*1024}
    s_add_u32 s47, s47, s46
    s_add_u32 s47, s47, {W2F}
    v_add_u32 v4, s45, v3
    v_add_u32 v5, {86*1024}, v4
    v_add_u32 v6, s47, v3
    v_add_u32 v7, {86*1024}, v6
    s_cmp_ge_u32 s42, 2
    s_cselect_b32 s49, 0x40000000, {20*1024}
    s_mul_i32 s56, s43, 43
    s_lshr_b32 s56, s56, 6
    s_mul_i32 s57, s43, 43
    s_add_u32 s57, s57, 21
    s_lshr_b32 s57, s57, 6
    s_lshl_b32 s56, s56, 8
    s_lshl_b32 s57, s57, 8
    s_add_u32 s56, s56, {FLG}
    s_add_u32 s57, s57, {FLG}
    v_min_u32 v75, 42, v1
    v_lshlrev_b32 v75, 2, v75
    s_waitcnt lgkmcnt(0)
    """)
    for r in range(64): A(f"v_mov_b32 v{AF+r}, 0")
    stamp(A,1,1)
    if "spin0" in opts: A("s_setprio 0")
    A(f"s_cmp_eq_u32 s42, 0\ns_cbranch_scc0 {name}_lw")
    poll(A,name,"pa",64,"s56")
    A(f"""
    ds_write_b32 v72, v73 offset:12
    {name}_lw:
    s_nop 15
    s_nop 15
    s_nop 15
    s_nop 15
    ds_read_b32 v76, v72 offset:12
    s_waitcnt lgkmcnt(0)
    v_readfirstlane_b32 s47, v76
    s_cmp_eq_u32 s47, 0
    s_cbranch_scc1 {name}_lw
    """)
    stamp(A,1,2)
    if "p2hi" not in opts: A("s_setprio 0")
    def loads(k):
        b=ST+16*(k%NS)
        so="s49" if k==21 else "s48"
        if k%4==0: A(f"s_mov_b32 s48, {(k>>2)*4096}")
        o=(k&3)*1024
        for d,a in ((0,6),(8,4),(4,7),(12,5)): A(f"buffer_load_dwordx4 {v(b+d,4)}, v{a}, s[64:67], {so} offen offset:{o}")
    for k in range(NS): loads(k)
    srd(A,28,4,0,2*MB); srd(A,32,6,0,2*MB)
    A(f"""
    v_and_b32 v2, 31, v1
    v_lshlrev_b32 v2, 10, v2
    v_lshrrev_b32 v0, 5, v1
    v_lshl_add_u32 v2, v0, 4, v2
    s_lshl_b32 s50, s43, 16
    s_and_b32 s51, s42, 1
    s_lshl_b32 s51, s51, 15
    s_add_u32 s50, s50, s51
    s_lshl_b32 s52, s44, 7
    s_add_u32 s50, s50, s52
    s_lshr_b32 s52, s42, 1
    s_lshl_b32 s53, s52, 6
    s_add_u32 s50, s50, s53
    s_lshl_b32 s52, s52, 15
    """)
    for k in range(22):
        b=ST+16*(k%NS)
        A(f"s_waitcnt vmcnt({4*min(NS-1,21-k)})")
        for nb in range(2):
            for tb in range(2):
                a=AF+16*(2*nb+tb)
                A(f"{MF} {v(a,16)}, {v(b+4*nb,4)}, {v(b+8+4*tb,4)}, {v(a,16)}")
                if "p2sp" in opts and (nb,tb)!=(1,1): A("s_nop 7")
        if k+NS<22: loads(k+NS)
    stamp(A,1,3)
    A(f"""
    buffer_load_dwordx4 {v(X,4)}, v2, s[28:31], s50 offen
    buffer_load_dwordx4 {v(X+4,4)}, v2, s[28:31], s50 offen offset:32
    v_mov_b32 v0, 0x20000
    s_lshl_b32 s53, s42, 14
    s_lshl_b32 s54, s44, 16
    s_add_u32 s54, s54, s53
    s_add_u32 s54, s54, {WOF}
    s_lshl_b32 s57, s43, 16
    s_add_u32 s57, s57, s53
    s_add_u32 s57, s57, {OF}
    s_lshl_b32 s58, s42, 12
    v_add_u32 v4, s58, v3
    v_add_u32 v5, s53, v3
    s_setprio 3
    {name}_aw:
    s_nop 15
    s_nop 15
    ds_read_b32 v6, v0 offset:8
    s_waitcnt lgkmcnt(0)
    v_readfirstlane_b32 s47, v6
    s_cmp_lt_u32 s47, 8
    s_cbranch_scc1 {name}_aw
    s_setprio 3
    """)
    def dma16(src,lds):
        for j in range(16):
            if j%4==0:
                A(f"s_add_u32 m0, s53, {lds+j*1024}")
                A(f"s_add_u32 s59, s{src}, {j*1024}")
            A(f"buffer_load_dwordx4 v3, s[64:67], s59 offen offset:{(j%4)*1024} lds")
    for blk in range(4):
        for j in range(4): A(f"ds_write_b128 v4, {v(AF+16*blk+4*j,4)} offset:{blk*16384+j*1024}")
    dma16(54,65536)
    A("s_waitcnt lgkmcnt(0)\ns_barrier")
    for j in range(4):
        for src in range(4): A(f"ds_read_b128 {v(ST+16*src+4*j,4)}, v5 offset:{src*4096+j*1024}")
    A(f"""
    s_mov_b32 s48, {fbits(-math.log2(math.e)):#x}
    s_lshr_b32 s56, s43, 2
    s_lshl_b32 s56, s56, 7
    s_add_u32 s56, s56, {FLG+6144}
    s_waitcnt lgkmcnt(0)
    s_cmp_eq_u32 s42, 0
    s_cbranch_scc0 {name}_nb
    v_mov_b32 v8, v75
    v_mov_b32 v9, v76
    v_and_b32 v75, 31, v1
    v_lshlrev_b32 v75, 2, v75
    """)
    poll(A,name,"pb",32,"s56")
    A(f"""
    v_mov_b32 v75, v8
    v_mov_b32 v76, v9
    {name}_nb:
    s_barrier
    """)
    stamp(A,1,4)
    dma16(57,0)
    G=ST; T=ST+16; T2=ST+32; AS=8; FB=[24,32,40,48]
    for r in range(16):
        A(f"v_add_f32 v{G+r}, v{G+r}, v{G+16+r}")
        A(f"v_add_f32 v{G+32+r}, v{G+32+r}, v{G+48+r}")
    for r in range(16): A(f"v_add_f32 v{G+r}, v{G+r}, v{G+32+r}")
    for r in range(16): A(f"v_mul_f32 v{T+r}, s48, v{G+r}")
    for r in range(16): A(f"v_exp_f32 v{T+r}, v{T+r}")
    A(f"""
    v_add_u32 v4, s51, v3
    v_add_u32 v5, s52, v3
    v_add_u32 v5, 0x10000, v5
    s_waitcnt vmcnt(32)
    v_permlane32_swap_b32 v{X}, v{X+2}
    v_permlane32_swap_b32 v{X+1}, v{X+3}
    v_permlane32_swap_b32 v{X+4}, v{X+6}
    v_permlane32_swap_b32 v{X+5}, v{X+7}
    """)
    for r in range(16): A(f"v_add_f32 v{T+r}, 1.0, v{T+r}")
    for r in range(16): A(f"v_rcp_f32 v{T+r}, v{T+r}")
    for r in range(8):
        A(f"v_lshlrev_b32 v{T2+2*r}, 16, v{X+r}")
        A(f"v_and_b32 v{T2+1+2*r}, 0xffff0000, v{X+r}")
    for r in range(16): A(f"v_mul_f32 v{G+r}, v{G+r}, v{T+r}")
    for r in range(16): A(f"v_mov_b32 v{AS+r}, 0")
    A("s_waitcnt vmcnt(0)\ns_barrier")
    def rd(k):
        A(f"ds_read_b128 {v(FB[k%4],4)}, v5 offset:{k*1024}")
        A(f"ds_read_b128 {v(FB[k%4]+4,4)}, v4 offset:{k*1024}")
    for k in range(3): rd(k)
    for k in range(32):
        if k+3<32: rd(k+3)
        A(f"s_waitcnt lgkmcnt({2*min(3,31-k)})")
        A(f"{MF} {v(AS,16)}, {v(FB[k%4],4)}, {v(FB[k%4]+4,4)}, {v(AS,16)}")
    A("s_nop 11")
    for r in range(16): A(f"v_fma_f32 v{AS+r}, v{AS+r}, v{G+r}, v{T2+r}")
    for r in range(8): A(f"v_cvt_pk_bf16_f32 v{AS+r}, v{AS+2*r}, v{AS+2*r+1}")
    A(f"""
    s_nop 1
    v_permlane32_swap_b32 v{AS}, v{AS+2}
    v_permlane32_swap_b32 v{AS+1}, v{AS+3}
    v_permlane32_swap_b32 v{AS+4}, v{AS+6}
    v_permlane32_swap_b32 v{AS+5}, v{AS+7}
    s_nop 1
    buffer_store_dwordx4 {v(AS,4)}, v2, s[32:35], s50 offen
    buffer_store_dwordx4 {v(AS+4,4)}, v2, s[32:35], s50 offen offset:32
    """)
    if asmlib.PROF:
        A("s_waitcnt vmcnt(0)")
        A("s_add_u32 s42, s42, 4")
    stamp(A,1,5); stamp_out(A,1,6,42)
    A("s_endpgm")
def gen_k2(name,mode,opts):
    A=Asm()
    A(f"""
    s_cmp_ge_u32 s2, 256
    s_cbranch_scc1 {name}_end
    s_load_dwordx2 s[20:21], s[0:1], 72
    v_and_b32 v1, 63, v0
    v_lshrrev_b32 v2, 6, v0
    s_and_b32 s40, s2, 7
    s_lshr_b32 s41, s2, 3
    v_readfirstlane_b32 s42, v2
    """)
    stamp(A,1,0)
    A("s_waitcnt lgkmcnt(0)")
    if mode=="both":
        A(f"""
        s_cmp_ge_u32 s42, 8
        s_cbranch_scc1 {name}_ffn
        """)
        attn(A,name,opts)
        A(f"{name}_ffn:")
        A("s_sub_u32 s42, s42, 8")
        ffn(A,name,opts,True)
    elif mode=="attn": attn(A,name,opts)
    else: ffn(A,name,opts,False)
    A(f"{name}_end:")
    A("s_endpgm")
    return head(name)+A.text(), kd(name,168), 131072+64
```

```python
from asmlib import *
import asmlib
from k2 import fbits, MF
import math
def gen_k3(name,opts):
    A=Asm()
    AS=0+16; AF=80; ST=144; NS=6
    A(f"""
    s_cmp_ge_u32 s2, 256
    s_cbranch_scc1 {name}_end
    s_load_dwordx2 s[4:5], s[0:1], 0
    s_load_dwordx2 s[6:7], s[0:1], 56
    s_load_dwordx2 s[20:21], s[0:1], 72
    v_and_b32 v1, 63, v0
    v_lshrrev_b32 v2, 6, v0
    s_and_b32 s40, s2, 7
    s_lshr_b32 s41, s2, 3
    v_readfirstlane_b32 s42, v2
    s_lshl_b32 s43, s40, 2
    s_lshr_b32 s44, s41, 3
    s_add_u32 s43, s43, s44
    s_and_b32 s44, s41, 7
    v_lshlrev_b32 v3, 4, v1
    s_waitcnt lgkmcnt(0)
    """)
    stamp(A,2,0)
    srd(A,24,20,0,WS_USED); srd(A,28,4,0,2*MB); srd(A,32,6,0,2*MB)
    A(f"""
    s_lshl_b32 s45, s43, 16
    s_lshl_b32 s46, s42, 13
    s_add_u32 s45, s45, s46
    s_add_u32 s45, s45, {OF}
    s_lshl_b32 s47, s44, 16
    s_add_u32 s47, s47, s46
    s_add_u32 s47, s47, {WOF}
    v_add_u32 v4, s45, v3
    v_add_u32 v5, 0x8000, v4
    v_add_u32 v6, s47, v3
    v_add_u32 v7, 0x8000, v6
    s_mul_i32 s46, s42, 22
    s_cmp_eq_u32 s42, 3
    s_cselect_b32 s46, 65, s46
    s_lshl_b32 s46, s46, 10
    s_mul_i32 s45, s43, {2*86*1024}
    s_add_u32 s45, s45, s46
    s_add_u32 s45, s45, {HF}
    s_mul_i32 s47, s44, {2*86*1024}
    s_add_u32 s47, s47, s46
    s_add_u32 s47, s47, {W2F}
    v_add_u32 v8, s45, v3
    v_add_u32 v9, {86*1024}, v8
    v_add_u32 v10, s47, v3
    v_add_u32 v11, {86*1024}, v10
    s_cmp_ge_u32 s42, 2
    s_cselect_b32 s52, 21, 22
    s_cselect_b32 s53, 0x40000000, 0
    s_lshl_b32 s52, s52, 10
    s_lshr_b32 s54, s41, 3
    s_lshl_b32 s54, s54, 1
    s_add_u32 s54, s54, s44
    s_and_b32 s48, s54, 7
    s_mul_i32 s49, s48, 2560
    s_and_b32 s49, s49, 0xfffffc00
    s_lshl_b32 s48, s48, 10
    """)
    if "k3stag" not in opts: A("s_mov_b32 s48, 0\ns_mov_b32 s49, 0")
    steps=[("o",k) for k in range(8)]+[("h",k) for k in range(22)]
    def loads(i):
        kind,k=steps[i]; b=ST+16*(i%NS)
        a0=4 if kind=="o" else 8
        so="s48" if kind=="o" else "s49"
        if kind=="h" and k==21: A("s_or_b32 s49, s49, s53")
        A(f"buffer_load_dwordx4 {v(b,4)}, v{a0+2}, s[24:27], {so} offen")
        A(f"buffer_load_dwordx4 {v(b+8,4)}, v{a0}, s[24:27], {so} offen")
        A(f"buffer_load_dwordx4 {v(b+4,4)}, v{a0+3}, s[24:27], {so} offen")
        A(f"buffer_load_dwordx4 {v(b+12,4)}, v{a0+1}, s[24:27], {so} offen")
        if kind=="o":
            A("s_add_u32 s48, s48, 1024\ns_and_b32 s48, s48, 0x1fff")
        elif k<21:
            A("s_add_u32 s49, s49, 1024\ns_cmp_ge_u32 s49, s52\ns_cselect_b32 s49, 0, s49")
    A(f"""
    v_and_b32 v12, 31, v1
    v_lshlrev_b32 v12, 10, v12
    v_lshrrev_b32 v13, 5, v1
    v_lshl_add_u32 v12, v13, 4, v12
    s_lshl_b32 s50, s43, 16
    s_and_b32 s51, s42, 1
    s_lshl_b32 s51, s51, 15
    s_add_u32 s50, s50, s51
    s_lshl_b32 s51, s44, 7
    s_add_u32 s50, s50, s51
    s_lshr_b32 s51, s42, 1
    s_lshl_b32 s51, s51, 6
    s_add_u32 s50, s50, s51
    s_nop 0
    buffer_load_dwordx4 v[240:243], v12, s[28:31], s50 offen
    buffer_load_dwordx4 v[244:247], v12, s[28:31], s50 offen offset:32
    """)
    for i in range(NS): loads(i)
    for r in range(128): A(f"v_mov_b32 v{16+r}, 0")
    A(f"""
    s_lshl_b32 s51, s42, 12
    v_add_u32 v13, s51, v3
    v_add_u32 v14, 0x10000, v13
    s_lshl_b32 s51, s42, 14
    v_add_u32 v15, s51, v3
    v_add_u32 v2, 0x10000, v15
    """)
    def red(acc):
        L=[]
        for r in range(16):
            L.append(f"v_add_f32 v{acc+r}, v{acc+r}, v{acc+16+r}")
            L.append(f"v_add_f32 v{acc+32+r}, v{acc+32+r}, v{acc+48+r}")
        for r in range(16): L.append(f"v_add_f32 v{acc+r}, v{acc+r}, v{acc+32+r}")
        return L
    n=len(steps)
    T2=AS+16
    for i in range(n):
        kind,k=steps[i]; b=ST+16*(i%NS); acc=AS if kind=="o" else AF
        A(f"s_waitcnt vmcnt({4*min(NS-1,n-1-i)})")
        if i in (0,8): stamp(A,2,{0:1,8:2}[i])
        for nb in range(2):
            for tb in range(2):
                a=acc+16*(2*nb+tb)
                A(f"{MF} {v(a,16)}, {v(b+4*nb,4)}, {v(b+8+4*tb,4)}, {v(a,16)}")
        if i+NS<n: loads(i+NS)
        if 9<=i<13:
            blk=i-9
            for j in range(4): A(f"ds_write_b128 v13, {v(AS+16*blk+4*j,4)} offset:{blk*16384+j*1024}")
        if i==14:
            A("s_waitcnt lgkmcnt(0)\ns_barrier")
            for src in range(4):
                for j in range(4): A(f"ds_read_b128 {v(AS+16*src+4*j,4)}, v15 offset:{src*4096+j*1024}")
        if i==16:
            A("s_waitcnt lgkmcnt(0)")
            for q in red(AS): A(q)
        if i==18:
            A("""
            v_permlane32_swap_b32 v240, v242
            v_permlane32_swap_b32 v241, v243
            v_permlane32_swap_b32 v244, v246
            v_permlane32_swap_b32 v245, v247
            s_nop 1
            """)
            for r in range(8):
                A(f"v_lshlrev_b32 v{T2+2*r}, 16, v{240+r}")
                A(f"v_and_b32 v{T2+1+2*r}, 0xffff0000, v{240+r}")
    stamp(A,2,3)
    A(f"s_mov_b32 s48, {fbits(-math.log2(math.e)):#x}")
    A("s_nop 7")
    for blk in range(4):
        if blk==3: A("s_nop 3")
        for j in range(4):
            A(f"ds_write_b128 v14, {v(AF+16*blk+4*j,4)} offset:{blk*16384+j*1024}")
    A("s_waitcnt lgkmcnt(0)")
    A("s_barrier")
    stamp(A,2,4)
    for j in range(4):
        for src in range(4):
            A(f"ds_read_b128 {v(AF+16*src+4*j,4)}, v2 offset:{src*4096+j*1024}")
    T=ST
    for j in range(4):
        A(f"s_waitcnt lgkmcnt({12-4*j})")
        R=range(4*j,4*j+4)
        for r in R:
            A(f"v_add_f32 v{AF+r}, v{AF+r}, v{AF+16+r}")
            A(f"v_add_f32 v{AF+32+r}, v{AF+32+r}, v{AF+48+r}")
        for r in R: A(f"v_add_f32 v{AF+r}, v{AF+r}, v{AF+32+r}")
        for r in R: A(f"v_mul_f32 v{T+r}, s48, v{AF+r}")
        for r in R: A(f"v_exp_f32 v{T+r}, v{T+r}")
        for r in R: A(f"v_mul_f32 v{AS+r}, v{AS+r}, v{AF+r}")
    for r in range(16): A(f"v_add_f32 v{T+r}, 1.0, v{T+r}")
    for r in range(16): A(f"v_rcp_f32 v{T+r}, v{T+r}")
    A("s_nop 0")
    for r in range(16): A(f"v_fma_f32 v{AS+r}, v{AS+r}, v{T+r}, v{T2+r}")
    for r in range(8): A(f"v_cvt_pk_bf16_f32 v{AS+r}, v{AS+2*r}, v{AS+2*r+1}")
    A(f"""
    s_nop 1
    v_permlane32_swap_b32 v{AS}, v{AS+2}
    v_permlane32_swap_b32 v{AS+1}, v{AS+3}
    v_permlane32_swap_b32 v{AS+4}, v{AS+6}
    v_permlane32_swap_b32 v{AS+5}, v{AS+7}
    buffer_store_dwordx4 {v(AS,4)}, v12, s[32:35], s50 offen
    buffer_store_dwordx4 {v(AS+4,4)}, v12, s[32:35], s50 offen offset:32
    """)
    if asmlib.PROF: A("s_waitcnt vmcnt(0)")
    stamp(A,2,5); stamp_out(A,2,6,42)
    A(f"{name}_end:")
    A("s_endpgm")
    return head(name)+A.text(), kd(name,248), 131072
```
